```python
import torch

def _softmax(x, axis=-1):
    return torch.softmax(x, dim=axis)
def _gelu(x):
    return torch.nn.functional.gelu(x, approximate="tanh")
def _silu(x):
    return torch.nn.functional.silu(x)
def _sigmoid(x):
    return torch.sigmoid(x)
def _layernorm(x, axis=-1, eps=1e-5):
    m = x.mean(dim=axis, keepdim=True)
    v = x.var(dim=axis, keepdim=True, unbiased=False)
    return (x - m) / torch.sqrt(v + eps)
def _scatter_add(tgt, idx, src, axis=0):
    return tgt.clone().index_add_(axis, idx, src)
def _segment_sum(src, seg, n):
    out = torch.zeros((n,) + src.shape[1:], dtype=src.dtype)
    return out.index_add_(0, seg, src)
def _pad(x, pw):
    flat = tuple(v for pair in reversed(pw) for v in pair)
    return torch.nn.functional.pad(x, flat)

kernel_name = 'gated_mix__gqa_block_cached__dense_activation_gelu__decode'

def setup_inputs():

    _w = (lambda a: (lambda t: t.to(torch.bfloat16) if t.is_floating_point() else t)(torch.as_tensor(a)))
    def _A_setup():
        B, Sq, D = 1, 1, 448
        Hq, Hkv, Sk, Dh = 16, 8, 65536, 256
        assert Hq % Hkv == 0, (Hq, Hkv)
        return {
            "x": _w((lambda *s: torch.randn(*s, dtype=torch.bfloat16) * 0.05)(B, Sq, D)),
            "k_cache": _w((lambda *s: torch.randn(*s, dtype=torch.bfloat16) * 6.4)(B, Hkv, Sk, Dh)),
            "v_cache": _w((lambda *s: torch.randn(*s, dtype=torch.bfloat16) * 0.4)(B, Hkv, Sk, Dh)),
            "wq": _w((lambda *s: torch.randn(*s, dtype=torch.bfloat16) * 6.4)(D, Hq * Dh) * (D ** -0.5)),
            "wo": _w((lambda *s: torch.randn(*s, dtype=torch.bfloat16) * 0.4)(Hq * Dh, D) * ((Hq * Dh) ** -0.5)),
        }
    _A_in = _A_setup()

    def _B_setup():
        B, S, D, F = 1, 1, 448, 1792
        return {
            "x": _w((lambda *s: torch.randn(*s, dtype=torch.bfloat16) * 0.05)(B, S, D)),
            "w1": _w((lambda *s: torch.randn(*s, dtype=torch.bfloat16) * 3.2)(D, F) * (D ** -0.5)),
            "b1": _w((lambda *s: torch.randn(*s, dtype=torch.bfloat16) * 3.2)(F) * 0.01),
            "w2": _w((lambda *s: torch.randn(*s, dtype=torch.bfloat16) * 0.2)(F, D) * (F ** -0.5)),
            "b2": _w((lambda *s: torch.randn(*s, dtype=torch.bfloat16) * 0.4)(D) * 0.01),
        }
    _B_in = _B_setup()

    return {
        "A_x": _A_in["x"],
        "A_k_cache": _A_in["k_cache"],
        "A_v_cache": _A_in["v_cache"],
        "A_wq": _A_in["wq"],
        "A_wo": _A_in["wo"],
        "B_x": _B_in["x"],
        "B_w1": _B_in["w1"],
        "B_b1": _B_in["b1"],
        "B_w2": _B_in["w2"],
        "B_b2": _B_in["b2"],
        "gate_w": _w((lambda *s: torch.randn(*s, dtype=torch.bfloat16) * 0.05)(448) * 16.0),
    }

def reference(A_x, A_k_cache, A_v_cache, A_wq, A_wo, B_x, B_w1, B_b1, B_w2, B_b2, gate_w):
    def _A_ref(x, k_cache, v_cache, wq, wo):
        B, Sq, D = x.shape
        Hq, Dh = 16, 256
        Hkv = k_cache.shape[1]
        rep = Hq // Hkv
        q = (lambda x, *d: x.permute(*d))((x @ wq).reshape(B, Sq, Hq, Dh), 0, 2, 1, 3)
        k = (lambda x, n, axis: torch.repeat_interleave(x, n, dim=axis))(k_cache, rep, axis=1)
        v = (lambda x, n, axis: torch.repeat_interleave(x, n, dim=axis))(v_cache, rep, axis=1)
        scores = torch.einsum("bhqd,bhkd->bhqk", q, k) * (Dh ** -0.5)
        p = _softmax(scores, axis=-1)
        o = torch.einsum("bhqk,bhkd->bhqd", p, v)
        return (lambda x, *d: x.permute(*d))(o, 0, 2, 1, 3).reshape(B, Sq, Hq * Dh) @ wo

    def _B_ref(x, w1, b1, w2, b2):
        h = torch.einsum("bsd,df->bsf", x, w1) + b1
        h = _gelu(h)
        return torch.einsum("bsf,fd->bsd", h, w2) + b2

    x = A_x
    g = _sigmoid((x * gate_w).sum(-1, keepdims=True))
    a = _A_ref(x, A_k_cache, A_v_cache, A_wq, A_wo)
    b = _B_ref(x, B_w1, B_b1, B_w2, B_b2)
    return g * a + (1 - g) * b
```

```python
import struct, sys, math

NAME = "gated_mix__gqa_block_cached__dense_activation_gelu__decode"
def f32(x): return "0x%08x" % struct.unpack("<I", struct.pack("<f", x))[0]

OPT = dict(POL="nt", SLEEP=2, STAMP=0)
for a in sys.argv[2:]:
    k, v = a.split("=")
    OPT[k] = v if not v.lstrip("-").isdigit() else int(v)

L = []
def A(s): L.append("    " + s)
def LBL(s): L.append(s + ":")
def C(s): L.append("    ; " + s)

QPART, QBF, HPART, BST, TAGL, ML, WGT, RED, WOBUF, OBUF = 0, 4096, 5120, 5376, 7168, 7296, 7552, 7680, 9728, 24576
LDS_BYTES = 57344
PART, PSTR = 0, 8192
AVEC, BVEC, VSTR = 0x200000, 0x300000, 4096
sWAVE, sHK, sI, sCNT, sC, sTAG = "s3", "s4", "s5", "s8", "s9", "s10"
pX, pK, pV, pWQ, pWO, pW1, pB1, pW2, pB2, pGW, pOUT, pDBG, pWS = (
    "s[16:17]", "s[18:19]", "s[20:21]", "s[22:23]", "s[24:25]", "s[28:29]", "s[30:31]",
    "s[32:33]", "s[34:35]", "s[36:37]", "s[38:39]", "s[40:41]", "s[42:43]")
srdK, srdV, srdWQ, srdWS = "s[44:47]", "s[48:51]", "s[52:55]", "s[56:59]"
sJJ = "s11"
vLANE, vN, vG = 2, 3, 1
MASK = 4
ACC = 8
Q = 16
vKV, vMR = 58, 33
vMC, vL = 34, 35
D = 36
vTA, vTB, vPK, vSA, vSB, vTM, vPA, vPB = 40, 41, 42, 43, 44, 45, 46, 47
AOP = 48
vT0, vT1, vT2, vTAGR = 56, 57, 32, 59
STG = 64
def v(i): return "v%d" % i
def vr(i, n): return "v[%d:%d]" % (i, i + n - 1)
KOFF = [0, 256, 2048, 2304]
def issue_K(st):
    for k in range(4):
        A(f"buffer_load_dwordx4 {vr(STG+32*st+4*k,4)}, {v(vKV)}, {srdK}, 0 offen offset:{KOFF[k]} {OPT['POL']}")
def issue_V(st):
    for k in range(4):
        A(f"buffer_load_dwordx4 {vr(STG+32*st+16+4*k,4)}, {v(vKV)}, {srdV}, 0 offen offset:{KOFF[k]} {OPT['POL']}")
def adv_KV():
    A(f"v_add_u32 {v(vKV)}, 0x200000, {v(vKV)}")
DPPALL = "row_mask:0xf bank_mask:0xf"
def row_allreduce(op, regs):
    assert len(regs) >= 3
    for pat in ["quad_perm:[1,0,3,2]", "quad_perm:[2,3,0,1]", "row_half_mirror", "row_mirror"]:
        for r in regs:
            A(f"{op}_dpp {v(r)}, {v(r)}, {v(r)} {pat} {DPPALL}")
def xrow_allreduce(op, regs, tmps, which=(32, 16)):
    for w in which:
        for r, t in zip(regs, tmps): A(f"v_mov_b32 {v(t)}, {v(r)}")
        A("s_nop 1")
        for r, t in zip(regs, tmps): A(f"v_permlane{w}_swap_b32 {v(r)}, {v(t)}")
        for r, t in zip(regs, tmps): A(f"{op} {v(r)}, {v(r)}, {v(t)}")

def stamp(idx):
    if not OPT["STAMP"]: return
    A("s_memrealtime s[70:71]")
    A("s_waitcnt lgkmcnt(0)")
    A("v_mov_b32 v60, s70"); A("v_mov_b32 v61, s71")
    A("s_lshl_b32 s72, s2, 8")
    A(f"s_lshl_b32 s73, {sWAVE}, 4")
    A(f"s_add_u32 s72, s72, {0x800000 + idx*0x100000}")
    A("s_add_u32 s72, s72, s73")
    A("v_mov_b32 v62, s72")
    A("s_mov_b64 s[74:75], exec")
    A("s_mov_b64 exec, 1")
    A(f"global_store_dwordx2 v62, v[60:61], {pWS}")
    A("s_mov_b64 exec, s[74:75]")

LBL(NAME + "_kernel")
A("s_cmp_ge_u32 s2, 256")
A("s_cbranch_scc1 L_end")
A("s_load_dwordx16 s[16:31], s[0:1], 0")
A("s_load_dwordx8 s[32:39], s[0:1], 64")
A("s_load_dwordx4 s[40:43], s[0:1], 96")
A(f"v_lshrrev_b32 v1, 6, v0")
A(f"v_and_b32 {v(vLANE)}, 63, v0")
A(f"v_readfirstlane_b32 {sWAVE}, v1")
A(f"s_and_b32 {sHK}, s2, 7")
A(f"s_lshr_b32 {sI}, s2, 3")
A(f"v_and_b32 {v(vN)}, 15, {v(vLANE)}")
A(f"v_lshrrev_b32 {v(vG)}, 4, {v(vLANE)}")
A(f"s_mov_b32 {sC}, {f32(0.0625*math.log2(math.e))}")
C("diag masks")
A(f"v_and_b32 {v(vT0)}, 1, {v(vLANE)}")
A(f"v_lshlrev_b32 {v(vT0)}, 4, {v(vT0)}")
A(f"v_mov_b32 {v(vT1)}, 0xffff")
A(f"v_lshlrev_b32 {v(vT1)}, {v(vT0)}, {v(vT1)}")
A(f"v_bfe_u32 {v(vT0)}, {v(vLANE)}, 1, 2")
for k in range(4):
    A(f"v_cmp_eq_u32 vcc, {k}, {v(vT0)}")
    A("s_nop 1")
    A(f"v_cndmask_b32 {v(MASK+k)}, 0, {v(vT1)}, vcc")
C("KV voffset = g*512 + n*16 + (i*16+w)*4096")
A(f"s_lshl_b32 s6, {sI}, 4")
A(f"s_add_u32 s6, s6, {sWAVE}")
A(f"s_lshl_b32 s6, s6, 12")
A(f"v_lshlrev_b32 {v(vKV)}, 9, {v(vG)}")
A(f"v_lshl_add_u32 {v(vKV)}, {v(vN)}, 4, {v(vKV)}")
A(f"v_add_u32 {v(vKV)}, s6, {v(vKV)}")
A(f"s_mul_i32 {sJJ}, {sHK}, 28")
A(f"s_add_u32 {sJJ}, {sJJ}, {sI}")
A("s_waitcnt lgkmcnt(0)")
A(f"s_lshl_b32 s6, {sHK}, 25")
A("s_add_u32 s44, s18, s6"); A("s_addc_u32 s45, s19, 0"); A("s_mov_b32 s46, 0x2000000"); A("s_mov_b32 s47, 0x20000")
A("s_add_u32 s48, s20, s6"); A("s_addc_u32 s49, s21, 0"); A("s_mov_b32 s50, 0x2000000"); A("s_mov_b32 s51, 0x20000")
A("s_mov_b32 s52, s22"); A("s_mov_b32 s53, s23"); A(f"s_mov_b32 s54, {448*8192}"); A("s_mov_b32 s55, 0x20000")
A("s_mov_b32 s56, s42"); A("s_mov_b32 s57, s43"); A("s_mov_b32 s58, 0x40000000"); A("s_mov_b32 s59, 0x20000")
stamp(0)
A(f"s_cmp_ge_u32 {sWAVE}, 8")
A("s_cbranch_scc1 L_bpath")

C("===== A waves: q projection =====")
XR = 20
RING = 72
QA = 12
QACC = 8
vWQ = 60
A(f"s_and_b32 s6, {sWAVE}, 3")
A(f"s_lshr_b32 s7, {sWAVE}, 2")
C("x byte off = 448*rh + 112*g")
A(f"v_mul_u32_u24 {v(vT1)}, 112, {v(vG)}")
A("s_mul_i32 s12, s7, 448")
A(f"v_add_u32 {v(vT1)}, s12, {v(vT1)}")
for k in range(7):
    A(f"global_load_dwordx4 {vr(XR+4*k,4)}, {v(vT1)}, {pX} offset:{16*k}")
C("wq voffset = (224rh+56g)*8192 + (512hk+128cq)*2 + 16n")
A(f"v_mul_u32_u24 {v(vWQ)}, 56, {v(vG)}")
A("s_mul_i32 s12, s7, 224")
A(f"v_add_u32 {v(vWQ)}, s12, {v(vWQ)}")
A(f"v_lshlrev_b32 {v(vWQ)}, 13, {v(vWQ)}")
A(f"v_lshl_add_u32 {v(vWQ)}, {v(vN)}, 4, {v(vWQ)}")
A(f"s_lshl_b32 s12, {sHK}, 10")
A("s_lshl_b32 s13, s6, 8")
A("s_add_u32 s12, s12, s13")
A(f"v_add_u32 {v(vWQ)}, s12, {v(vWQ)}")
A("s_mov_b32 s12, 0")
for k in range(14):
    A(f"buffer_load_dwordx4 {vr(RING+4*k,4)}, {v(vWQ)}, {srdWQ}, s12 offen")
    A("s_add_u32 s12, s12, 8192")
for k in range(4): A(f"v_mov_b32 {v(QACC+k)}, 0")
A("s_mov_b32 s13, 0x01000100")
A("s_mov_b32 s14, 0x03020302")
A(f"s_mov_b32 {sCNT}, 3")
def qstep(k, last):
    a = QA + 4*(k & 1)
    A(f"v_perm_b32 {v(vT0)}, {v(XR+k//2)}, {v(XR+k//2)}, {'s13' if k%2==0 else 's14'}")
    for d in range(4):
        A(f"v_and_b32 {v(a+d)}, {v(vT0)}, {v(MASK+d)}")
    A(f"s_waitcnt vmcnt({13 if not last else 13-k})")
    A("s_nop 0")
    A(f"v_mfma_f32_16x16x32_bf16 {vr(QACC,4)}, {vr(a,4)}, {vr(RING+4*k,4)}, {vr(QACC,4)}")
    if not last:
        A(f"buffer_load_dwordx4 {vr(RING+4*k,4)}, {v(vWQ)}, {srdWQ}, s12 offen")
        A("s_add_u32 s12, s12, 8192")
A("s_waitcnt vmcnt(14)")
LBL("L_qloop")
for k in range(14): qstep(k, False)
for k in range(21): A(f"v_mov_b32 {v(XR+k)}, {v(XR+7+k)}")
A(f"s_sub_u32 {sCNT}, {sCNT}, 1")
A(f"s_cmp_lg_u32 {sCNT}, 0")
A("s_cbranch_scc1 L_qloop")
for k in range(14): qstep(k, True)
C("start this wave's K/V stream")
issue_K(0); issue_V(0); adv_KV()
issue_K(1); issue_V(1); adv_KV()
C("q partial -> LDS (lanes 0..31): QPART + rh*2048 + (128cq + 8n + 4G)*4")
A(f"v_lshlrev_b32 {v(vT1)}, 5, {v(vN)}")
A(f"v_lshl_add_u32 {v(vT1)}, {v(vG)}, 4, {v(vT1)}")
A("s_lshl_b32 s12, s7, 11")
A("s_lshl_b32 s13, s6, 9")
A("s_add_u32 s12, s12, s13")
A(f"v_add_u32 {v(vT1)}, s12, {v(vT1)}")
A("s_mov_b32 exec_hi, 0")
A(f"ds_write_b128 {v(vT1)}, {vr(QACC,4)} offset:{QPART}")
A("s_mov_b64 exec, -1")
A("s_waitcnt lgkmcnt(0)")
A("s_barrier")
A(f"s_cmp_ge_u32 {sWAVE}, 4")
A("s_cbranch_scc1 L_b2")
C("q finalize: thread t<256: cols 2t,2t+1")
A(f"v_lshlrev_b32 {v(vT1)}, 3, v0")
A(f"ds_read_b64 v[12:13], {v(vT1)} offset:{QPART}")
A(f"ds_read_b64 v[14:15], {v(vT1)} offset:{QPART+2048}")
A(f"v_lshlrev_b32 {v(vT0)}, 2, v0")
A("s_waitcnt lgkmcnt(0)")
A("v_add_f32 v12, v12, v14")
A("v_add_f32 v13, v13, v15")
A("v_cvt_pk_bf16_f32 v12, v12, v13")
A(f"ds_write_b32 {v(vT0)}, v12 offset:{QBF}")
A("s_branch L_b2")

LBL("L_bpath")
C("===== B waves: small loads first, then K/V prefetch =====")
A(f"s_sub_u32 s6, {sWAVE}, 8")
A("v_subrev_u32 v60, 512, v0")
C("wo slice -> regs (later LDS)")
A(f"s_lshl_b32 s12, {sHK}, 5")
A(f"s_add_u32 s12, s12, {sI}")
A("s_mul_i32 s12, s12, 14336")
A("s_add_u32 s60, s24, s12"); A("s_addc_u32 s61, s25, 0")
A("v_lshlrev_b32 v61, 4, v60")
A("global_load_dwordx4 v[8:11], v61, s[60:61]")
A("s_cmp_ge_u32 s6, 6")
A("s_cbranch_scc1 L_b_nowo2")
A("v_add_u32 v62, 0x2000, v61")
A("global_load_dwordx4 v[12:15], v62, s[60:61]")
LBL("L_b_nowo2")
A("s_cmp_eq_u32 s6, 7")
A("s_cbranch_scc1 L_b_w15")
A(f"s_cmp_ge_u32 {sI}, 28")
A("s_cbranch_scc1 L_b_kv")
C("MLP up: row r = tb ; w1[r][8jj..8jj+8), x[r]")
A("s_movk_i32 s12, 3584")
A("v_mul_lo_u32 v62, v60, s12")
A(f"s_lshl_b32 s13, {sJJ}, 4")
A("v_add_u32 v62, s13, v62")
A(f"global_load_dwordx4 v[16:19], v62, {pW1}")
A("v_lshlrev_b32 v62, 1, v60")
A(f"global_load_ushort v20, v62, {pX}")
A("s_cmp_ge_u32 s6, 4")
A("s_cbranch_scc1 L_b_kv")
C("MLP down loads: t'=tb<224 : w2[8jj+rr][2t',2t'+1] ; b1[8jj + (lane&7)]")
A(f"v_and_b32 v62, 7, {v(vLANE)}")
A("v_lshlrev_b32 v62, 1, v62")
A("v_add_u32 v62, s13, v62")
A(f"global_load_ushort v21, v62, {pB1}")
A(f"s_mul_i32 s12, {sJJ}, 7168")
A("s_add_u32 s12, s12, 3584")
A("v_lshlrev_b32 v62, 2, v60")
A("v_add_u32 v62, s12, v62")
A("v_cmp_gt_u32 vcc, 224, v60")
A("s_and_saveexec_b64 s[62:63], vcc")
for rr in range(8):
    A(f"global_load_dword {v(24+rr)}, v62, {pW2} offset:{rr*896-3584}")
A("s_mov_b64 exec, s[62:63]")
A("s_branch L_b_kv")
LBL("L_b_w15")
C("wave 15: launch tag (first realtime wins) + gate inputs")
A("s_memrealtime s[12:13]")
for k in range(8): A(f"v_mov_b32 {v(16+k)}, 0")
A("v_mov_b32 v62, 0")
A("v_mov_b32 v29, 0")
A("s_waitcnt lgkmcnt(0)")
A("s_or_b32 s12, s12, 1")
A("v_mov_b32 v28, s12")
A("v_mov_b32 v63, s12")
A("s_mov_b64 exec, 1")
A(f"global_atomic_cmpswap {v(vTAGR)}, v62, v[28:29], {pDBG} sc0")
A("s_mov_b64 exec, -1")
A(f"v_lshlrev_b32 v62, 4, {v(vLANE)}")
A(f"v_cmp_gt_u32 vcc, 56, {v(vLANE)}")
A("s_and_saveexec_b64 s[62:63], vcc")
A(f"global_load_dwordx4 v[16:19], v62, {pX}")
A(f"global_load_dwordx4 v[20:23], v62, {pGW}")
A("s_mov_b64 exec, s[62:63]")
LBL("L_b_kv")
issue_K(0); issue_V(0); adv_KV()
issue_K(1); issue_V(1); adv_KV()
A("s_waitcnt vmcnt(16)")
C("wo slice to LDS")
A(f"ds_write_b128 v61, v[8:11] offset:{WOBUF}")
A("s_cmp_ge_u32 s6, 6")
A("s_cbranch_scc1 L_b_nowo3")
A(f"ds_write_b128 v61, v[12:15] offset:{WOBUF+8192}")
LBL("L_b_nowo3")
A("s_cmp_eq_u32 s6, 7")
A("s_cbranch_scc1 L_b_gate")
A(f"s_cmp_ge_u32 {sI}, 28")
A("s_cbranch_scc1 L_b_b1")
C("MLP up partial")
A("v_lshlrev_b32 v20, 16, v20")
for k in range(4):
    A(f"v_lshlrev_b32 {v(40+2*k)}, 16, {v(16+k)}")
    A(f"v_and_b32 {v(41+2*k)}, 0xffff0000, {v(16+k)}")
for k in range(8): A(f"v_mul_f32 {v(40+k)}, {v(40+k)}, v20")
row_allreduce("v_add_f32", list(range(40, 48)))
xrow_allreduce("v_add_f32", list(range(40, 48)), list(range(48, 56)))
A("s_lshl_b32 s12, s6, 5")
A("v_mov_b32 v62, s12")
A("s_mov_b64 exec, 1")
A(f"ds_write_b128 v62, v[40:43] offset:{HPART}")
A(f"ds_write_b128 v62, v[44:47] offset:{HPART+16}")
A("s_mov_b64 exec, -1")
A("s_branch L_b_b1")
LBL("L_b_gate")
C("gate: sigmoid(bf16(sum(bf16(x*gw))))")
for k in range(4):
    A(f"v_lshlrev_b32 v40, 16, {v(16+k)}")
    A(f"v_and_b32 v41, 0xffff0000, {v(16+k)}")
    A(f"v_lshlrev_b32 v42, 16, {v(20+k)}")
    A(f"v_and_b32 v43, 0xffff0000, {v(20+k)}")
    A("v_mul_f32 v40, v40, v42")
    A("v_mul_f32 v41, v41, v43")
    A("v_cvt_pk_bf16_f32 v40, v40, v41")
    A("v_lshlrev_b32 v42, 16, v40")
    A("v_and_b32 v43, 0xffff0000, v40")
    if k == 0:
        A("v_add_f32 v44, v42, v43")
    else:
        A("v_add_f32 v44, v44, v42")
        A("v_add_f32 v44, v44, v43")
for pat in ["quad_perm:[1,0,3,2]", "quad_perm:[2,3,0,1]", "row_half_mirror", "row_mirror"]:
    A("s_nop 1")
    A(f"v_add_f32_dpp v44, v44, v44 {pat} {DPPALL}")
xrow_allreduce("v_add_f32", [44], [45])
A("v_cvt_pk_bf16_f32 v44, v44, v44")
A("v_lshlrev_b32 v44, 16, v44")
A(f"v_mul_f32 v44, {f32(-math.log2(math.e))}, v44")
A("v_exp_f32 v44, v44")
A("s_nop 0")
A("v_add_f32 v44, 1.0, v44")
A("v_rcp_f32 v44, v44")
A("s_nop 0")
A("v_cvt_pk_bf16_f32 v44, v44, v44")
A("v_lshlrev_b32 v44, 16, v44")
A("v_mov_b32 v62, 0")
A("s_mov_b64 exec, 1")
A(f"ds_write_b32 v62, v44 offset:{TAGL+4}")
A("s_mov_b64 exec, -1")
LBL("L_b_b1")
A("s_waitcnt lgkmcnt(0)")
A("s_barrier")
A("s_cmp_ge_u32 s6, 4")
A("s_cbranch_scc1 L_b2")
A(f"s_cmp_ge_u32 {sI}, 28")
A("s_cbranch_scc1 L_b2")
C("MLP: h for f = lane&7")
A(f"v_and_b32 v62, 7, {v(vLANE)}")
A("v_lshlrev_b32 v62, 2, v62")
for k in range(7):
    A(f"ds_read_b32 {v(40+k)}, v62 offset:{HPART+32*k}")
A("s_waitcnt lgkmcnt(0)")
for k in range(1, 7): A(f"v_add_f32 v40, v40, {v(40+k)}")
A("v_cvt_pk_bf16_f32 v40, v40, v40")
A("v_lshlrev_b32 v40, 16, v40")
A("v_lshlrev_b32 v21, 16, v21")
A("v_add_f32 v40, v40, v21")
A("v_cvt_pk_bf16_f32 v40, v40, v40")
A("v_lshlrev_b32 v40, 16, v40")
k2 = -2.0*math.sqrt(2.0/math.pi)*math.log2(math.e)
A("v_mul_f32 v41, v40, v40")
A(f"v_mov_b32 v42, {f32(k2)}")
A(f"s_mov_b32 s12, {f32(k2*0.044715)}")
A("v_fma_f32 v41, v41, s12, v42")
A("v_mul_f32 v41, v41, v40")
A("v_exp_f32 v41, v41")
A("s_nop 0")
A("v_add_f32 v41, 1.0, v41")
A("v_rcp_f32 v41, v41")
A("s_nop 0")
A("v_mul_f32 v40, v40, v41")
A("v_cvt_pk_bf16_f32 v40, v40, v40")
A("v_lshlrev_b32 v40, 16, v40")
A("s_nop 0")
for k in range(8): A(f"v_readlane_b32 s{64+k}, v40, {k}")
A("v_mov_b32 v44, 0"); A("v_mov_b32 v45, 0")
for k in range(8):
    A(f"v_lshlrev_b32 v42, 16, {v(24+k)}")
    A(f"v_and_b32 v43, 0xffff0000, {v(24+k)}")
    A(f"v_fmac_f32 v44, s{64+k}, v42")
    A(f"v_fmac_f32 v45, s{64+k}, v43")
A("v_lshlrev_b32 v62, 3, v60")
A("v_cmp_gt_u32 vcc, 224, v60")
A("s_and_saveexec_b64 s[62:63], vcc")
A(f"ds_write_b64 v62, v[44:45] offset:{BST}")
A("s_mov_b64 exec, s[62:63]")

LBL("L_b2")
A("s_waitcnt lgkmcnt(0)")
A("s_barrier")
A(f"v_lshlrev_b32 {v(vT1)}, 4, {v(vN)}")
for h in range(2):
    for hf in range(2):
        A(f"ds_read_b128 {vr(Q+8*h+4*hf,4)}, {v(vT1)} offset:{QBF+512*h+256*hf}")
for k in range(8): A(f"v_mov_b32 {v(ACC+k)}, 0")
A(f"v_mov_b32 {v(vMR)}, 0xff800000")
A(f"v_mov_b32 {v(vMC)}, 0xff800000")
A(f"v_mov_b32 {v(vL)}, 0")
A(f"s_mov_b32 {sCNT}, 8")
A("s_waitcnt lgkmcnt(0)")
stamp(1)

def tile(st, tag):
    K = STG + 32*st
    V = K + 16
    A("s_waitcnt vmcnt(12)")
    for hf in range(2):
        for k in range(4):
            for grp in range(2):
                for h in range(2):
                    d = D + 2*grp + h
                    src2 = "0" if (hf == 0 and k == 0) else v(d)
                    A(f"v_dot2_f32_bf16 {v(d)}, {v(K+8*grp+4*hf+k)}, {v(Q+8*h+4*hf+k)}, {src2}")
    issue_K(st)
    A(f"v_add_f32_dpp {v(vTA)}, {v(D+0)}, {v(D+0)} row_ror:8 row_mask:0xf bank_mask:0x3")
    A(f"v_add_f32_dpp {v(vTB)}, {v(D+2)}, {v(D+2)} row_ror:8 row_mask:0xf bank_mask:0x3")
    A(f"v_add_f32_dpp {v(vTA)}, {v(D+1)}, {v(D+1)} row_ror:8 row_mask:0xf bank_mask:0xc")
    A(f"v_add_f32_dpp {v(vTB)}, {v(D+3)}, {v(D+3)} row_ror:8 row_mask:0xf bank_mask:0xc")
    for pat in ["row_half_mirror", "quad_perm:[1,0,3,2]", "quad_perm:[2,3,0,1]"]:
        A("s_nop 0")
        A(f"v_add_f32_dpp {v(vTA)}, {v(vTA)}, {v(vTA)} {pat} {DPPALL}")
        A(f"v_add_f32_dpp {v(vTB)}, {v(vTB)}, {v(vTB)} {pat} {DPPALL}")
    A(f"v_cvt_pk_bf16_f32 {v(vPK)}, {v(vTA)}, {v(vTB)}")
    A(f"v_lshlrev_b32 {v(vSA)}, 16, {v(vPK)}")
    A(f"v_and_b32 {v(vSB)}, 0xffff0000, {v(vPK)}")
    A(f"v_max_f32 {v(vTM)}, {v(vSA)}, {v(vSB)}")
    A(f"v_cmp_gt_f32 vcc, {v(vTM)}, {v(vMR)}")
    A(f"s_cbranch_vccz L_nomax{tag}")
    C("new running max: rescale")
    A(f"v_max_f32 {v(vTM)}, {v(vTM)}, {v(vMR)}")
    xrow_allreduce("v_max_f32", [vTM], [vT0])
    A(f"v_sub_f32 {v(vT1)}, {v(vMR)}, {v(vTM)}")
    A(f"v_mul_f32 {v(vT1)}, {sC}, {v(vT1)}")
    A(f"v_exp_f32 {v(vT1)}, {v(vT1)}")
    A(f"v_mov_b32 {v(vMR)}, {v(vTM)}")
    A(f"v_mul_f32 {v(vMC)}, {sC}, {v(vTM)}")
    A(f"v_mul_f32 {v(vL)}, {v(vL)}, {v(vT1)}")
    A(f"v_mov_b32 {v(vT2)}, {v(vT1)}")
    A("s_nop 1")
    A(f"v_mov_b32_dpp {v(vT2)}, {v(vT1)} row_ror:8 row_mask:0x3 bank_mask:0xc")
    A(f"v_mov_b32_dpp {v(vT2)}, {v(vT1)} row_ror:8 row_mask:0xc bank_mask:0x3")
    for k in range(8): A(f"v_mul_f32 {v(ACC+k)}, {v(ACC+k)}, {v(vT2)}")
    LBL(f"L_nomax{tag}")
    A(f"v_fma_f32 {v(vPA)}, {v(vSA)}, {sC}, -{v(vMC)}")
    A(f"v_fma_f32 {v(vPB)}, {v(vSB)}, {sC}, -{v(vMC)}")
    A(f"v_exp_f32 {v(vPA)}, {v(vPA)}")
    A(f"v_exp_f32 {v(vPB)}, {v(vPB)}")
    A("s_nop 0")
    A(f"v_cvt_pk_bf16_f32 {v(vT0)}, {v(vPA)}, {v(vPA)}")
    A(f"v_cvt_pk_bf16_f32 {v(vT1)}, {v(vPB)}, {v(vPB)}")
    for d in range(4): A(f"v_and_b32 {v(AOP+d)}, {v(vT0)}, {v(MASK+d)}")
    for d in range(4): A(f"v_and_b32 {v(AOP+4+d)}, {v(vT1)}, {v(MASK+d)}")
    A(f"v_add_f32 {v(vL)}, {v(vL)}, {v(vPA)}")
    A(f"v_add_f32 {v(vL)}, {v(vL)}, {v(vPB)}")
    A("s_waitcnt vmcnt(12)")
    A(f"v_mfma_f32_16x16x32_bf16 {vr(ACC,4)}, {vr(AOP,4)}, {vr(V,4)}, {vr(ACC,4)}")
    A(f"v_mfma_f32_16x16x32_bf16 {vr(ACC+4,4)}, {vr(AOP,4)}, {vr(V+4,4)}, {vr(ACC+4,4)}")
    A(f"v_mfma_f32_16x16x32_bf16 {vr(ACC,4)}, {vr(AOP+4,4)}, {vr(V+8,4)}, {vr(ACC,4)}")
    A(f"v_mfma_f32_16x16x32_bf16 {vr(ACC+4,4)}, {vr(AOP+4,4)}, {vr(V+12,4)}, {vr(ACC+4,4)}")
    issue_V(st)
    adv_KV()

LBL("L_loop")
tile(0, "0")
tile(1, "1")
A(f"s_sub_u32 {sCNT}, {sCNT}, 1")
A(f"s_cmp_lg_u32 {sCNT}, 0")
A("s_cbranch_scc1 L_loop")
stamp(2)

C("===== T1: combine the 16 waves of this workgroup =====")
xrow_allreduce("v_add_f32", [vL], [vT0])
C("O -> LDS : OBUF + wave*2048 + ((l>>5)*256 + 8n + 4*((l>>4)&1))*4")
A(f"v_lshrrev_b32 {v(vT1)}, 5, {v(vLANE)}")
A(f"v_lshlrev_b32 {v(vT1)}, 10, {v(vT1)}")
A(f"v_lshl_add_u32 {v(vT1)}, {v(vN)}, 5, {v(vT1)}")
A(f"v_and_b32 {v(vT2)}, 1, {v(vG)}")
A(f"v_lshl_add_u32 {v(vT1)}, {v(vT2)}, 4, {v(vT1)}")
A(f"s_lshl_b32 s12, {sWAVE}, 11")
A(f"v_add_u32 {v(vT1)}, s12, {v(vT1)}")
A(f"ds_write_b128 {v(vT1)}, {vr(ACC,4)} offset:{OBUF}")
A(f"ds_write_b128 {v(vT1)}, {vr(ACC+4,4)} offset:{OBUF+512}")
C("(Mc,l) from lanes 0 and 8: ML + h*128 + wave*8")
A(f"v_lshlrev_b32 {v(vT1)}, 4, {v(vLANE)}")
A(f"s_lshl_b32 s12, {sWAVE}, 3")
A(f"v_add_u32 {v(vT1)}, s12, {v(vT1)}")
A("s_mov_b64 exec, 0x101")
A(f"ds_write_b64 {v(vT1)}, {vr(vMC,2)} offset:{ML}")
A("s_mov_b64 exec, -1")
A(f"s_cmp_lg_u32 {sWAVE}, 15")
A("s_cbranch_scc1 L_t1_notag")
C("wave 15 lane 0: tag = old ? old : mine   (mine still in v28? no: recompute from s12 saved) ")
A(f"v_cmp_eq_u32 vcc, 0, {v(vTAGR)}")
A("v_mov_b32 v62, 0")
A("s_nop 0")
A(f"v_cndmask_b32 {v(vTAGR)}, {v(vTAGR)}, v63, vcc")
A("s_mov_b64 exec, 1")
A(f"ds_write_b32 v62, {v(vTAGR)} offset:{TAGL}")
A("s_mov_b64 exec, -1")
LBL("L_t1_notag")
A("s_waitcnt vmcnt(0) lgkmcnt(0)")
A("s_barrier")
A("v_mov_b32 v62, 0")
A(f"ds_read_b32 v61, v62 offset:{TAGL}")
A(f"s_lshl_b32 s12, s2, 13")
A("s_add_u32 s60, s42, s12"); A("s_addc_u32 s61, s43, 0")
A(f"s_cmp_ge_u32 {sWAVE}, 8")
A("s_cbranch_scc1 L_t1_hi")
A("v_lshrrev_b32 v60, 8, v0")
A("v_lshlrev_b32 v60, 7, v60")
for k in range(8):
    A(f"ds_read_b128 {vr(64+4*k,4)}, v60 offset:{ML+16*k}")
A("v_lshlrev_b32 v62, 2, v0")
for k in range(16):
    A(f"ds_read_b32 {v(96+k)}, v62 offset:{OBUF+2048*k}")
A("s_waitcnt lgkmcnt(15)")
A("s_waitcnt lgkmcnt(0)")
A("v_readfirstlane_b32 s10, v61")
C("M_k = v64+2k, l_k = v65+2k")
A("v_max3_f32 v40, v64, v66, v68")
for k in range(3, 15, 2): A(f"v_max3_f32 v40, v40, {v(64+2*k)}, {v(66+2*k)}")
A("v_max_f32 v40, v40, v94")
for k in range(16): A(f"v_sub_f32 {v(64+2*k)}, {v(64+2*k)}, v40")
for k in range(16): A(f"v_exp_f32 {v(64+2*k)}, {v(64+2*k)}")
A("v_mul_f32 v42, v64, v65")
A("v_mul_f32 v44, v64, v96")
for k in range(1, 16):
    A(f"v_fmac_f32 v42, {v(64+2*k)}, {v(65+2*k)}")
    A(f"v_fmac_f32 v44, {v(64+2*k)}, {v(96+k)}")
A("v_mov_b32 v45, v61")
A("v_lshlrev_b32 v62, 3, v0")
A("global_store_dwordx2 v62, v[44:45], s[60:61] sc1")
A("v_mov_b32 v41, v61"); A("v_mov_b32 v43, v61")
A("v_and_b32 v62, 255, v0")
A("v_lshrrev_b32 v60, 4, v0")
A("v_add_u32 v60, 0x1000, v60")
A("v_cmp_eq_u32 vcc, 0, v62")
A("s_and_saveexec_b64 s[62:63], vcc")
A("s_cbranch_execz L_t1_noml")
A("global_store_dwordx4 v60, v[40:43], s[60:61] sc1")
LBL("L_t1_noml")
A("s_mov_b64 exec, s[62:63]")
A(f"s_cmp_eq_u32 {sWAVE}, 0")
A("s_cbranch_scc1 L_t2")
A("s_branch L_t3_check")
LBL("L_t1_hi")
A("s_waitcnt lgkmcnt(0)")
A("v_readfirstlane_b32 s10, v61")
A(f"s_cmp_ge_u32 {sWAVE}, 12")
A("s_cbranch_scc1 L_t3_check")
A(f"s_cmp_ge_u32 {sI}, 28")
A("s_cbranch_scc1 L_t3_check")
C("publish b partial")
A("v_subrev_u32 v60, 512, v0")
A("v_lshlrev_b32 v62, 3, v60")
A(f"ds_read_b64 v[44:45], v62 offset:{BST}")
A(f"s_lshl_b32 s12, {sJJ}, 12")
A(f"s_add_u32 s12, s12, {BVEC}")
A("v_lshlrev_b32 v62, 4, v60")
A("v_add_u32 v62, s12, v62")
A("v_mov_b32 v41, v61"); A("v_mov_b32 v43, v61")
A("v_cmp_gt_u32 vcc, 224, v60")
A("s_waitcnt lgkmcnt(0)")
A("v_mov_b32 v40, v44"); A("v_mov_b32 v42, v45")
A("s_and_saveexec_b64 s[62:63], vcc")
A(f"global_store_dwordx4 v62, v[40:43], {pWS} sc1")
A("s_mov_b64 exec, s[62:63]")
A("s_branch L_t3_check")

def poll(name, loads, tags, tmp):
    A("s_mov_b32 s12, 200000")
    LBL(f"L_poll_{name}")
    for l in loads: A(l)
    A("s_waitcnt vmcnt(0)")
    for j, t in enumerate(tags):
        A(f"v_xor_b32 {v(tmp+j)}, {sTAG}, {v(t)}")
    regs = [tmp+j for j in range(len(tags))]
    while len(regs) > 1:
        if len(regs) >= 3:
            A(f"v_or3_b32 {v(regs[0])}, {v(regs[0])}, {v(regs[1])}, {v(regs[2])}"); regs = [regs[0]] + regs[3:]
        else:
            A(f"v_or_b32 {v(regs[0])}, {v(regs[0])}, {v(regs[1])}"); regs = [regs[0]]
    A(f"v_cmp_ne_u32 vcc, 0, {v(tmp)}")
    A(f"s_cbranch_vccz L_done_{name}")
    A("s_mov_b64 exec, vcc")
    A(f"s_sleep {OPT['SLEEP']}")
    A("s_sub_u32 s12, s12, 1")
    A("s_cmp_lg_u32 s12, 0")
    A(f"s_cbranch_scc1 L_poll_{name}")
    LBL(f"L_done_{name}")
    A("s_mov_b64 exec, -1")

LBL("L_t2")
C("===== T2 (wave 0): combine 32 splits for 16 o-dims, out-projection =====")
C("wo B operands: lane(n,g): WOBUF + (4jj+g)*896 + cb*256 + 16n")
A(f"v_mul_u32_u24 v60, 896, {v(vG)}")
A(f"v_lshl_add_u32 v60, {v(vN)}, 4, v60")
for jj in range(4):
    for cb in range(4):
        A(f"ds_read_b128 {vr(64+16*jj+4*cb,4)}, v60 offset:{WOBUF+jj*3584+cb*256}")
C("O granule voffset: (64*sq + hk)*8192 + (16i + d)*8 ; + k*65536")
A(f"v_lshlrev_b32 v60, 19, {v(vG)}")
A(f"v_lshl_add_u32 v60, {v(vN)}, 3, v60")
A(f"s_lshl_b32 s13, {sHK}, 13")
A(f"s_lshl_b32 s14, {sI}, 7")
A("s_add_u32 s13, s13, s14")
A("v_add_u32 v60, s13, v60")
C("ML voffset: ((lane&31)*8 + hk)*8192 + 4096 + hh*16")
A(f"v_and_b32 v62, 31, {v(vLANE)}")
A("v_lshlrev_b32 v62, 16, v62")
A(f"s_lshl_b32 s13, {sHK}, 13")
A(f"s_lshr_b32 s14, {sI}, 4")
A("s_lshl_b32 s14, s14, 4")
A("s_add_u32 s13, s13, s14")
A("s_add_u32 s13, s13, 0x1000")
A("v_add_u32 v62, s13, v62")
for k in range(8): A(f"s_mov_b32 s{64+k}, {k*65536}")
loads = [f"buffer_load_dwordx2 {vr(16+2*k,2)}, v60, {srdWS}, s{64+k} offen sc1" for k in range(8)]
loads.append(f"buffer_load_dwordx4 v[32:35], v62, {srdWS}, 0 offen sc1")
poll("t2", loads, [17+2*k for k in range(8)] + [33, 35], 40)
stamp(3)
C("weights")
A("v_mov_b32 v36, v32")
for pat in ["quad_perm:[1,0,3,2]", "quad_perm:[2,3,0,1]", "row_half_mirror", "row_mirror"]:
    A("s_nop 1")
    A(f"v_max_f32_dpp v36, v36, v36 {pat} {DPPALL}")
xrow_allreduce("v_max_f32", [36], [37], which=(16,))
A("v_sub_f32 v32, v32, v36")
A("v_exp_f32 v32, v32")
A("s_nop 0")
A("v_mul_f32 v34, v34, v32")
for pat in ["quad_perm:[1,0,3,2]", "quad_perm:[2,3,0,1]", "row_half_mirror", "row_mirror"]:
    A("s_nop 1")
    A(f"v_add_f32_dpp v34, v34, v34 {pat} {DPPALL}")
xrow_allreduce("v_add_f32", [34], [37], which=(16,))
A("v_rcp_f32 v34, v34")
A(f"v_lshlrev_b32 v62, 2, {v(vLANE)}")
A("v_mul_f32 v32, v32, v34")
A("s_mov_b32 exec_hi, 0")
A(f"ds_write_b32 v62, v32 offset:{WGT}")
A("s_mov_b64 exec, -1")
A(f"v_lshlrev_b32 v62, 5, {v(vG)}")
A("s_waitcnt lgkmcnt(0)")
A(f"ds_read_b128 v[40:43], v62 offset:{WGT}")
A(f"ds_read_b128 v[44:47], v62 offset:{WGT+16}")
A("s_waitcnt lgkmcnt(0)")
A("v_mul_f32 v36, v40, v16")
for k in range(1, 8): A(f"v_fmac_f32 v36, {v(40+k)}, {v(16+2*k)}")
xrow_allreduce("v_add_f32", [36], [37])
A("v_cvt_pk_bf16_f32 v36, v36, v36")
A(f"v_lshlrev_b32 v62, 2, {v(vG)}")
for jj in range(4):
    A(f"v_add_u32 v61, {16*jj}, v62")
    A(f"ds_bpermute_b32 {v(40+jj)}, v61, v36")
C("tag slots of the store tuples v16..v47 region reuse: tuples at v[16+4t..]")
A("s_waitcnt lgkmcnt(0)")
for jj in range(4):
    for d in range(4):
        A(f"v_and_b32 {v(44+4*jj+d)}, {v(40+jj)}, {v(MASK+d)}")
A("s_nop 1")
for jj in range(4):
    for cb in range(4):
        src = "0" if jj == 0 else vr(8+4*cb, 4)
        A(f"v_mfma_f32_16x16x32_bf16 {vr(8+4*cb,4)}, {vr(44+4*jj,4)}, {vr(64+16*jj+4*cb,4)}, {src}")
C("a-vector store address: AVEC + wg*4096 + (8n+4G)*8 + cb*1024")
A(f"v_lshlrev_b32 v62, 6, {v(vN)}")
A(f"v_lshl_add_u32 v62, {v(vG)}, 5, v62")
A("s_lshl_b32 s13, s2, 12")
A(f"s_add_u32 s13, s13, {AVEC}")
A("v_add_u32 v62, s13, v62")
for t in range(8):
    A(f"v_mov_b32 {v(25+4*t)}, {sTAG}")
    A(f"v_mov_b32 {v(27+4*t)}, {sTAG}")
A("s_nop 3")
for cb in range(4):
    for hfp in range(2):
        t = 2*cb + hfp
        A(f"v_mov_b32 {v(24+4*t)}, {v(8+4*cb+2*hfp)}")
        A(f"v_mov_b32 {v(26+4*t)}, {v(8+4*cb+2*hfp+1)}")
A("s_mov_b32 exec_hi, 0")
for cb in range(4):
    if cb == 3: A("s_mov_b64 exec, 0x00ff00ff")
    for hfp in range(2):
        t = 2*cb + hfp
        A(f"global_store_dwordx4 v62, {vr(24+4*t,4)}, {pWS} offset:{cb*1024+16*hfp} sc1")
A("s_mov_b64 exec, -1")
stamp(4)

LBL("L_t3_check")
A(f"s_cmp_lt_u32 {sI}, 28")
A("s_cbranch_scc1 L_end")
A(f"s_sub_u32 s6, {sI}, 28")
A("s_lshl_b32 s6, s6, 3")
A(f"s_add_u32 s6, s6, {sHK}")
A("s_cmp_ge_u32 s6, 28")
A("s_cbranch_scc1 L_end")
C("===== T3: final reduce for columns 16f..16f+15 =====")
A("v_lshrrev_b32 v60, 3, v0")
A("v_lshlrev_b32 v60, 12, v60")
A("v_and_b32 v61, 7, v0")
A("v_lshl_add_u32 v60, v61, 4, v60")
A("s_lshl_b32 s13, s6, 7")
A("v_add_u32 v60, s13, v60")
C("b2 for lanes 0..7 (dword = 2 cols)")
A("s_lshl_b32 s13, s6, 5")
A("v_lshlrev_b32 v61, 2, v61")
A("v_add_u32 v61, s13, v61")
A(f"global_load_dword v56, v61, {pB2}")
A(f"s_mov_b32 s64, {AVEC}"); A(f"s_mov_b32 s65, {AVEC+128*VSTR}"); A(f"s_mov_b32 s66, {BVEC}"); A(f"s_mov_b32 s67, {BVEC+128*VSTR}")
A(f"s_cmp_ge_u32 {sWAVE}, 12")
A("s_cbranch_scc1 L_t3_p3")
loads = [f"buffer_load_dwordx4 {vr(16+4*k,4)}, v60, {srdWS}, s{64+k} offen sc1" for k in range(4)]
poll("t3a", loads, [17+2*k for k in range(8)], 40)
A("s_branch L_t3_sum")
LBL("L_t3_p3")
A("v_mov_b32 v28, 0"); A("v_mov_b32 v30, 0")
poll("t3b", loads[:3], [17+2*k for k in range(6)], 40)
LBL("L_t3_sum")
stamp(5)
A("v_add_f32 v40, v16, v20"); A("v_add_f32 v41, v18, v22"); A("v_add_f32 v42, v24, v28"); A("v_add_f32 v43, v26, v30")
for r in range(40, 44): A(f"v_add_f32_dpp {v(r)}, {v(r)}, {v(r)} row_ror:8 {DPPALL}")
xrow_allreduce("v_add_f32", [40, 41, 42, 43], [44, 45, 46, 47])
A(f"v_lshlrev_b32 v62, 4, {v(vLANE)}")
A(f"s_lshl_b32 s13, {sWAVE}, 7")
A("v_add_u32 v62, s13, v62")
A("s_mov_b64 exec, 0xff")
A(f"ds_write_b128 v62, v[40:43] offset:{RED}")
A("s_mov_b64 exec, -1")
A("s_waitcnt lgkmcnt(0)")
A("s_barrier")
A(f"s_cmp_lg_u32 {sWAVE}, 0")
A("s_cbranch_scc1 L_end")
A(f"v_lshlrev_b32 v62, 4, {v(vLANE)}")
A(f"ds_read_b128 v[40:43], v62 offset:{RED}")
A(f"ds_read_b128 v[44:47], v62 offset:{RED+1024}")
A("v_mov_b32 v62, 0")
A(f"ds_read_b32 v57, v62 offset:{TAGL+4}")
A("s_waitcnt lgkmcnt(0)")
for k in range(4): A(f"v_add_f32 {v(40+k)}, {v(40+k)}, {v(44+k)}")
for r in range(40, 44): A(f"v_add_f32_dpp {v(r)}, {v(r)}, {v(r)} row_ror:8 {DPPALL}")
xrow_allreduce("v_add_f32", [40, 41, 42, 43], [44, 45, 46, 47])
C("epilogue with the reference's bf16 roundings")
A("v_cvt_pk_bf16_f32 v40, v40, v41")
A("v_cvt_pk_bf16_f32 v42, v42, v43")
A("v_lshlrev_b32 v44, 16, v42"); A("v_and_b32 v45, 0xffff0000, v42")
A("v_lshlrev_b32 v46, 16, v56"); A("v_and_b32 v47, 0xffff0000, v56")
A("v_add_f32 v44, v44, v46"); A("v_add_f32 v45, v45, v47")
A("v_cvt_pk_bf16_f32 v42, v44, v45")
A("v_sub_f32 v58, 1.0, v57")
A("v_cvt_pk_bf16_f32 v58, v58, v58")
A("v_lshlrev_b32 v58, 16, v58")
A("v_lshlrev_b32 v44, 16, v40"); A("v_and_b32 v45, 0xffff0000, v40")
A("v_mul_f32 v44, v44, v57"); A("v_mul_f32 v45, v45, v57")
A("v_cvt_pk_bf16_f32 v40, v44, v45")
A("v_lshlrev_b32 v46, 16, v42"); A("v_and_b32 v47, 0xffff0000, v42")
A("v_mul_f32 v46, v46, v58"); A("v_mul_f32 v47, v47, v58")
A("v_cvt_pk_bf16_f32 v42, v46, v47")
A("v_lshlrev_b32 v44, 16, v40"); A("v_and_b32 v45, 0xffff0000, v40")
A("v_lshlrev_b32 v46, 16, v42"); A("v_and_b32 v47, 0xffff0000, v42")
A("v_add_f32 v44, v44, v46"); A("v_add_f32 v45, v45, v47")
A("v_cvt_pk_bf16_f32 v40, v44, v45")
A("s_mov_b64 exec, 0xff")
A(f"global_store_dword v61, v40, {pOUT}")
A("s_mov_b64 exec, -1")
stamp(6)
LBL("L_end")
A("s_endpgm")

hdr = open("cdna_kernels/%s.s.ref" % NAME).read().split("; Override launch geometry")[0]
out = hdr
out += "; generated by gen/gen.py (hand-written generator)\n"
out += f"; @launch grid=(256,1,1) block=(1024,1,1) lds={LDS_BYTES}\n"
out += '.amdgcn_target "amdgcn-amd-amdhsa--gfx950"\n.text\n'
out += f".globl {NAME}_kernel\n.p2align 8\n.type {NAME}_kernel,@function\n"
out += "\n".join(L) + "\n"
out += f""".section .rodata,"a"
.p2align 6
.amdhsa_kernel {NAME}_kernel
  .amdhsa_next_free_vgpr 128
  .amdhsa_next_free_sgpr 96
  .amdhsa_accum_offset 128
  .amdhsa_group_segment_fixed_size 0
  .amdhsa_kernarg_size 112
  .amdhsa_user_sgpr_count 2
  .amdhsa_user_sgpr_kernarg_segment_ptr 1
  .amdhsa_system_sgpr_workgroup_id_x 1
.end_amdhsa_kernel
"""
open(sys.argv[1], "w").write(out)
```

```python
import struct, sys, math

NAME = "gated_mix__gqa_block_cached__dense_activation_gelu__decode"
def f32(x): return "0x%08x" % struct.unpack("<I", struct.pack("<f", x))[0]

OPT = dict(POL="nt", SLEEP=2, STAMP=0, SPOL="nt", DYN=1, HMAP=0, BAR0=1, PACE=0, CPF=0, PRIO=1, RS=12, NACT=4, N16=64, LGS=2)
for a in sys.argv[2:]:
    k, v_ = a.split("=")
    OPT[k] = v_ if not v_.lstrip("-").isdigit() else int(v_)
SPOL = OPT["SPOL"].replace("_", " ") if OPT["SPOL"] != "none" else ""

L = []
def A(s): L.append("    " + s)
def LBL(s): L.append(s + ":")
def C(s): L.append("    ; " + s)

QBF, QFLAG, TKT, GATE, ML, WGT, RED, WOBUF, OBUF = 0, 1024, 1028, 1032, 1152, 1408, 1536, 3584, 18432
LDS_BYTES = OBUF + 32768
NEXT, CBASE = 1036, 1040
CNTB = 0x3E0000
PART, PSTR = 0, 8192
AVEC, BVEC, VSTR = 0x200000, 0x300000, 4096
QX, EPOCH = 0x3F0000, 0x1F00
sWAVE, sHK, sI, sCNT, sC, sTAG, sJJ, sEP = "s3", "s4", "s5", "s8", "s9", "s10", "s11", "s15"
sTK0, sTK1, sBASE = "s76", "s77", "s78"
sPHK, sPI, sPEND, sFET, sCOFF, sCB = "s80", "s81", "s82", "s83", "s84", "s85"
pX, pK, pV, pWQ, pWO, pW1, pB1, pW2, pB2, pGW, pOUT, pDBG, pWS = (
    "s[16:17]", "s[18:19]", "s[20:21]", "s[22:23]", "s[24:25]", "s[28:29]", "s[30:31]",
    "s[32:33]", "s[34:35]", "s[36:37]", "s[38:39]", "s[40:41]", "s[42:43]")
srdK, srdV, srdT, srdWS = "s[44:47]", "s[48:51]", "s[52:55]", "s[56:59]"
vG, vLANE, vN = 1, 2, 3
MASK = 4
ACC = 8
Q = 16
vT2, vMR = 32, 33
vMC, vL = 34, 35
D = 36
vTA, vTB, vPK, vSA, vSB, vTM, vPA, vPB = 40, 41, 42, 43, 44, 45, 46, 47
AOP = 48
vT0, vT1, vKV, vLP = 56, 57, 58, 59
vTK, vONE, vZ = 60, 61, 62
STG = 64
def v(i): return "v%d" % i
def vr(i, n): return "v[%d:%d]" % (i, i + n - 1)
KOFF = [0, 256, 2048, 2304]
def issue_K(st):
    for k in range(4):
        A(f"buffer_load_dwordx4 {vr(STG+32*st+4*k,4)}, {v(vKV)}, {srdK}, 0 offen offset:{KOFF[k]} {OPT['POL']}")
def issue_V(st):
    for k in range(4):
        A(f"buffer_load_dwordx4 {vr(STG+32*st+16+4*k,4)}, {v(vKV)}, {srdV}, 0 offen offset:{KOFF[k]} {OPT['POL']}")
DPPALL = "row_mask:0xf bank_mask:0xf"
def row_allreduce(op, regs, pats=("quad_perm:[1,0,3,2]", "quad_perm:[2,3,0,1]", "row_half_mirror", "row_mirror")):
    for pat in pats:
        if len(regs) < 3: A("s_nop 1")
        for r in regs:
            A(f"{op}_dpp {v(r)}, {v(r)}, {v(r)} {pat} {DPPALL}")
def xrow_allreduce(op, regs, tmps, which=(32, 16)):
    for w in which:
        for r, t in zip(regs, tmps): A(f"v_mov_b32 {v(t)}, {v(r)}")
        A("s_nop 1")
        for r, t in zip(regs, tmps): A(f"v_permlane{w}_swap_b32 {v(r)}, {v(t)}")
        for r, t in zip(regs, tmps): A(f"{op} {v(r)}, {v(r)}, {v(t)}")
def poll(name, loads, tags, tmp):
    A("s_mov_b32 s12, 200000")
    LBL(f"L_poll_{name}")
    for l in loads: A(l)
    A("s_waitcnt vmcnt(0)")
    for j, t in enumerate(tags):
        A(f"v_xor_b32 {v(tmp+j)}, {sTAG}, {v(t)}")
    regs = [tmp+j for j in range(len(tags))]
    while len(regs) > 1:
        if len(regs) >= 3:
            A(f"v_or3_b32 {v(regs[0])}, {v(regs[0])}, {v(regs[1])}, {v(regs[2])}"); regs = [regs[0]] + regs[3:]
        else:
            A(f"v_or_b32 {v(regs[0])}, {v(regs[0])}, {v(regs[1])}"); regs = [regs[0]]
    A(f"v_cmp_ne_u32 vcc, 0, {v(tmp)}")
    A(f"s_cbranch_vccz L_done_{name}")
    A("s_mov_b64 exec, vcc")
    A(f"s_sleep {OPT['SLEEP']}")
    A("s_sub_u32 s12, s12, 1")
    A("s_cmp_lg_u32 s12, 0")
    A(f"s_cbranch_scc1 L_poll_{name}")
    LBL(f"L_done_{name}")
    A("s_mov_b64 exec, -1")
def stamp(idx):
    if not OPT["STAMP"]: return
    A("s_memrealtime s[70:71]")
    A("s_waitcnt lgkmcnt(0)")
    A("v_mov_b32 v36, s70"); A("v_mov_b32 v37, s71")
    A("s_lshl_b32 s72, s2, 8")
    A(f"s_lshl_b32 s73, {sWAVE}, 4")
    A(f"s_add_u32 s72, s72, {0x800000 + idx*0x100000}")
    A("s_add_u32 s72, s72, s73")
    A("v_mov_b32 v38, s72")
    A("s_mov_b64 s[74:75], exec")
    A("s_mov_b64 exec, 1")
    A(f"global_store_dwordx2 v38, v[36:37], {pWS}")
    if idx == 0:
        A("s_getreg_b32 s70, hwreg(HW_REG_XCC_ID)")
        A("v_mov_b32 v36, s70")
        A(f"global_store_dword v38, v36, {pWS} offset:8")
    A("s_mov_b64 exec, s[74:75]")
def unpack(lo, hi, src):
    A(f"v_lshlrev_b32 {v(lo)}, 16, {v(src)}")
    A(f"v_and_b32 {v(hi)}, 0xffff0000, {v(src)}")
def rnd(r):
    A(f"v_cvt_pk_bf16_f32 {v(r)}, {v(r)}, {v(r)}")
    A(f"v_lshlrev_b32 {v(r)}, 16, {v(r)}")
def srd(base4, lo, hi, size):
    A(f"s_mov_b32 s{base4}, {lo}"); A(f"s_mov_b32 s{base4+1}, {hi}"); A(f"s_mov_b32 s{base4+2}, {size}"); A(f"s_mov_b32 s{base4+3}, 0x20000")

LBL(NAME + "_kernel")
A("s_cmp_ge_u32 s2, 256")
A("s_cbranch_scc1 L_end")
A("s_load_dwordx16 s[16:31], s[0:1], 0")
A("s_load_dwordx8 s[32:39], s[0:1], 64")
A("s_load_dwordx4 s[40:43], s[0:1], 96")
A(f"v_lshrrev_b32 v1, 6, v0")
A(f"v_and_b32 {v(vLANE)}, 63, v0")
A(f"v_readfirstlane_b32 {sWAVE}, v1")
C("physical ids (producer roles, L2 sharing): phk = wg&7, pidx = wg>>3 ; logical ids (stream): hk = wg>>5, i = wg&31")
A(f"s_and_b32 {sPHK}, s2, 7")
A(f"s_lshr_b32 {sPI}, s2, 3")
C("each head's 32 WGs sit on all XCDs; the 4 on one XCD (wg&7) take adjacent i")
A(f"s_lshr_b32 {sHK}, s2, 5")
A(f"s_lshl_b32 {sI}, {sPHK}, 2")
A(f"s_and_b32 s6, {sPI}, 3")
A(f"s_or_b32 {sI}, {sI}, s6")
A(f"s_lshl_b32 s2, {sI}, 3")
A(f"s_or_b32 s2, s2, {sHK}")
A(f"s_lshl_b32 {sCOFF}, {sHK}, 12")
A(f"s_add_u32 {sCOFF}, {sCOFF}, {CNTB}")
A(f"v_and_b32 {v(vN)}, 15, {v(vLANE)}")
A(f"v_lshrrev_b32 {v(vG)}, 4, {v(vLANE)}")
C("K/V lane part = g*512 + n*16 ; WG base = i*65536 ; first tile = wave")
A(f"v_lshlrev_b32 {v(vLP)}, 9, {v(vG)}")
A(f"v_lshl_add_u32 {v(vLP)}, {v(vN)}, 4, {v(vLP)}")
A(f"s_lshl_b32 {sBASE}, {sI}, 16")
A(f"s_lshl_b32 s6, {sWAVE}, 12")
A(f"s_add_u32 s6, s6, {sBASE}")
A(f"v_add_u32 {v(vKV)}, s6, {v(vLP)}")
A("s_waitcnt lgkmcnt(0)")
A(f"s_load_dword {sEP}, {pWS}, {EPOCH}")
A(f"s_lshl_b32 s6, {sHK}, 25")
A("s_add_u32 s44, s18, s6"); A("s_addc_u32 s45, s19, 0"); A("s_mov_b32 s46, 0x2000000"); A("s_mov_b32 s47, 0x20000")
A("s_add_u32 s48, s20, s6"); A("s_addc_u32 s49, s21, 0"); A("s_mov_b32 s50, 0x2000000"); A("s_mov_b32 s51, 0x20000")
srd(56, "s42", "s43", "0x40000000")
stamp(0)
A(f"s_cmp_ge_u32 {sWAVE}, 3")
A("s_cbranch_scc1 L_kv0")
if OPT["PRIO"]: A("s_setprio 3")
A(f"s_cmp_eq_u32 {sWAVE}, 1")
A("s_cbranch_scc1 L_w1")
A(f"s_cmp_eq_u32 {sWAVE}, 2")
A("s_cbranch_scc1 L_w2")

def tagcalc():
    A("s_waitcnt lgkmcnt(0)")
    A(f"s_mul_i32 {sTAG}, {sEP}, 0x9E3779B1")
    A(f"s_add_u32 {sTAG}, {sTAG}, 0x7F4A7C15")

C("===== wave 0: 16-column slice of q = x @ wq ; publish ; gather the group's q =====")
C("LDS may hold an earlier launch's flag: clear it before the start barrier")
A("v_mov_b32 v62, 0")
A(f"ds_write_b32 v62, v62 offset:{QFLAG}")
srd(52, "s22", "s23", 448*8192)
A(f"v_lshrrev_b32 v60, 1, {v(vLANE)}")
A("v_lshlrev_b32 v61, 13, v60")
A(f"v_and_b32 v62, 1, {v(vLANE)}")
A("v_lshl_add_u32 v61, v62, 4, v61")
A(f"s_load_dword {sCB}, {pWS}, {sCOFF}")
A(f"s_lshl_b32 s12, {sHK}, 10")
A(f"s_lshl_b32 s13, {sI}, 5")
A("s_add_u32 s12, s12, s13")
for k in range(14):
    A(f"buffer_load_dwordx4 {vr(64+4*k,4)}, v61, {srdT}, s12 offen {SPOL}")
    if k < 13: A(f"s_add_u32 s12, s12, {32*8192}")
A("v_lshlrev_b32 v60, 1, v60")
for k in range(14):
    A(f"global_load_ushort {v(16+k)}, v60, {pX} offset:{64*k}")
A("s_waitcnt lgkmcnt(0)")
A("s_barrier")
A("v_mov_b32 v62, 0")
A(f"s_add_u32 s13, {sI}, 64")
A("s_lshl_b32 s13, s13, 23")
A("s_or_b32 s13, s13, 0x40000")
A("v_mov_b32 v61, s13")
A(f"ds_write_b32 v62, v61 offset:{TKT}")
A(f"s_add_u32 s13, s13, {512<<19}")
A("v_mov_b32 v61, s13")
A(f"ds_write_b32 v62, v61 offset:{NEXT}")
tagcalc()
A(f"v_mov_b32 v61, {sCB}")
A(f"ds_write_b32 v62, v61 offset:{CBASE}")
A("s_mov_b32 s13, 0x05040100")
A("s_mov_b32 s14, 0x07060302")
A("s_waitcnt vmcnt(0)")
for kp in range(7):
    A(f"v_lshl_or_b32 {v(16+2*kp)}, {v(17+2*kp)}, 16, {v(16+2*kp)}")
for kp in range(7):
    a, b = 64+8*kp, 68+8*kp
    for d in range(4):
        A(f"v_perm_b32 {v(48+2*d)}, {v(b+d)}, {v(a+d)}, s13")
        A(f"v_perm_b32 {v(49+2*d)}, {v(b+d)}, {v(a+d)}, s14")
    for c in range(8):
        A(f"v_dot2_f32_bf16 {v(40+c)}, {v(48+c)}, {v(16+2*kp)}, {'0' if kp==0 else v(40+c)}")
A("s_nop 2")
row_allreduce("v_add_f32", list(range(40, 48)), pats=("row_ror:8", "row_ror:4", "row_ror:2"))
xrow_allreduce("v_add_f32", list(range(40, 48)), list(range(48, 56)))
for k in range(4):
    A(f"v_cvt_pk_bf16_f32 {v(48+2*k)}, {v(40+2*k)}, {v(41+2*k)}")
    A(f"v_mov_b32 {v(49+2*k)}, {sTAG}")
A(f"v_lshlrev_b32 v60, 5, {v(vLANE)}")
A(f"s_lshl_b32 s12, {sHK}, 11")
A(f"s_add_u32 s12, s12, {QX}")
A("v_add_u32 v60, s12, v60")
A(f"s_lshl_b32 s13, {sI}, 6")
A(f"s_lshl_b32 s14, {sHK}, 11")
A("s_add_u32 s13, s13, s14")
A(f"s_add_u32 s13, s13, {QX}")
A(f"v_lshlrev_b32 v61, 5, {v(vLANE)}")
A("v_add_u32 v61, s13, v61")
A("s_mov_b64 exec, 3")
A(f"global_store_dwordx4 v61, v[48:51], {pWS} sc1")
A(f"global_store_dwordx4 v61, v[52:55], {pWS} offset:16 sc1")
A("s_mov_b64 exec, -1")
stamp(11)
poll("q", [f"global_load_dwordx4 v[24:27], v60, {pWS} sc1", f"global_load_dwordx4 v[28:31], v60, {pWS} offset:16 sc1"], [25, 27, 29, 31], 40)
stamp(12)
A("v_mov_b32 v25, v26"); A("v_mov_b32 v26, v28"); A("v_mov_b32 v27, v30")
A(f"v_lshlrev_b32 v62, 4, {v(vLANE)}")
A(f"ds_write_b128 v62, v[24:27] offset:{QBF}")
A("v_mov_b32 v62, 0")
A("v_mov_b32 v61, 1")
A("s_waitcnt lgkmcnt(0)")
A(f"ds_write_b32 v62, v61 offset:{QFLAG}")
A("s_branch L_kv")

LBL("L_w1")
A(f"s_cmp_ge_u32 {sPI}, 28")
A("s_cbranch_scc1 L_gate")
C("===== wave 1: MLP slice f = 8jj..8jj+7 =====")
A(f"s_mul_i32 {sJJ}, {sPHK}, 28")
A(f"s_add_u32 {sJJ}, {sJJ}, {sPI}")
srd(52, "s28", "s29", 448*3584)
A(f"s_lshl_b32 s13, {sJJ}, 4")
A(f"s_load_dwordx4 s[64:67], {pB1}, s13")
A(f"v_mul_u32_u24 v61, 3584, {v(vLANE)}")
for k in range(7):
    A(f"buffer_load_dwordx4 {vr(64+4*k,4)}, v61, {srdT}, s13 offen {SPOL}")
    if k < 6: A(f"s_add_u32 s13, s13, {64*3584}")
A(f"v_lshlrev_b32 v60, 1, {v(vLANE)}")
for k in range(7):
    A(f"global_load_ushort {v(16+k)}, v60, {pX} offset:{128*k}")
A(f"s_mul_i32 s12, {sJJ}, 7168")
A("s_add_u32 s12, s12, 3584")
A(f"v_lshlrev_b32 v62, 4, {v(vLANE)}")
A("v_add_u32 v62, s12, v62")
A("s_mov_b32 exec_hi, 0x00ffffff")
for rr in range(8):
    A(f"global_load_dwordx4 {vr(92+4*rr,4)}, v62, {pW2} offset:{rr*896-3584} {SPOL}")
A("s_mov_b64 exec, -1")
A("s_barrier")
tagcalc()
A("s_waitcnt vmcnt(8)")
for k in range(7):
    A(f"v_lshlrev_b32 {v(16+k)}, 16, {v(16+k)}")
    for d in range(4): unpack(48+2*d, 49+2*d, 64+4*k+d)
    for c in range(8):
        if k == 0: A(f"v_mul_f32 {v(40+c)}, {v(48+c)}, {v(16+k)}")
        else: A(f"v_fmac_f32 {v(40+c)}, {v(48+c)}, {v(16+k)}")
row_allreduce("v_add_f32", list(range(40, 48)))
xrow_allreduce("v_add_f32", list(range(40, 48)), list(range(48, 56)))
k2 = -2.0*math.sqrt(2.0/math.pi)*math.log2(math.e)
A(f"v_mov_b32 v56, {f32(k2)}")
A(f"s_mov_b32 s12, {f32(k2*0.044715)}")
for c in range(8):
    sreg = 64 + c//2
    if c % 2 == 0: A(f"s_lshl_b32 s13, s{sreg}, 16")
    else: A(f"s_and_b32 s13, s{sreg}, 0xffff0000")
    rnd(40+c)
    A(f"v_add_f32 {v(40+c)}, s13, {v(40+c)}")
    rnd(40+c)
for c in range(8): A(f"v_mul_f32 {v(48+c)}, {v(40+c)}, {v(40+c)}")
for c in range(8): A(f"v_fma_f32 {v(48+c)}, {v(48+c)}, s12, v56")
for c in range(8): A(f"v_mul_f32 {v(48+c)}, {v(48+c)}, {v(40+c)}")
for c in range(8): A(f"v_exp_f32 {v(48+c)}, {v(48+c)}")
for c in range(8): A(f"v_add_f32 {v(48+c)}, 1.0, {v(48+c)}")
for c in range(8): A(f"v_rcp_f32 {v(48+c)}, {v(48+c)}")
for c in range(8): A(f"v_mul_f32 {v(40+c)}, {v(40+c)}, {v(48+c)}")
for c in range(8): rnd(40+c)
A("s_waitcnt vmcnt(0)")
for rr in range(8):
    for d in range(4): unpack(48+2*d, 49+2*d, 92+4*rr+d)
    for c in range(8):
        if rr == 0: A(f"v_mul_f32 {v(64+2*c)}, {v(48+c)}, {v(40+rr)}")
        else: A(f"v_fmac_f32 {v(64+2*c)}, {v(48+c)}, {v(40+rr)}")
for c in range(8): A(f"v_mov_b32 {v(65+2*c)}, {sTAG}")
A(f"s_lshl_b32 s12, {sJJ}, 12")
A(f"s_add_u32 s12, s12, {BVEC}")
A(f"v_lshlrev_b32 v62, 6, {v(vLANE)}")
A("v_add_u32 v62, s12, v62")
A("s_mov_b32 exec_hi, 0x00ffffff")
for t in range(4):
    A(f"global_store_dwordx4 v62, {vr(64+4*t,4)}, {pWS} offset:{16*t} sc1")
A("s_mov_b64 exec, -1")
A("s_waitcnt vmcnt(0)")
A("s_branch L_kv")
LBL("L_gate")
C("gate: sigmoid(bf16(sum(bf16(x*gw))))")
for k in range(8): A(f"v_mov_b32 {v(16+k)}, 0")
A(f"v_lshlrev_b32 v62, 4, {v(vLANE)}")
A("s_mov_b32 exec_hi, 0x00ffffff")
A(f"global_load_dwordx4 v[16:19], v62, {pX}")
A(f"global_load_dwordx4 v[20:23], v62, {pGW}")
A("s_mov_b64 exec, -1")
A("s_barrier")
A("s_waitcnt vmcnt(0)")
for k in range(4):
    unpack(40, 41, 16+k); unpack(42, 43, 20+k)
    A("v_mul_f32 v40, v40, v42")
    A("v_mul_f32 v41, v41, v43")
    A("v_cvt_pk_bf16_f32 v40, v40, v41")
    unpack(42, 43, 40)
    if k == 0: A("v_add_f32 v44, v42, v43")
    else:
        A("v_add_f32 v44, v44, v42"); A("v_add_f32 v44, v44, v43")
row_allreduce("v_add_f32", [44])
xrow_allreduce("v_add_f32", [44], [45])
rnd(44)
A(f"v_mul_f32 v44, {f32(-math.log2(math.e))}, v44")
A("v_exp_f32 v44, v44")
A("s_nop 0")
A("v_add_f32 v44, 1.0, v44")
A("v_rcp_f32 v44, v44")
A("s_nop 0")
rnd(44)
A("v_mov_b32 v62, 0")
A("s_mov_b64 exec, 1")
A(f"ds_write_b32 v62, v44 offset:{GATE}")
A("s_mov_b64 exec, -1")
A("s_branch L_kv")

LBL("L_w2")
C("===== wave 2: 16 rows of wo (14336 B contiguous) straight into LDS =====")
srd(52, "s24", "s25", 4096*896)
A(f"s_lshl_b32 s12, {sHK}, 5")
A(f"s_add_u32 s12, s12, {sI}")
A("s_mul_i32 s12, s12, 14336")
A(f"v_lshlrev_b32 v62, 4, {v(vLANE)}")
for k in range(14):
    if k % 4 == 0:
        A(f"s_mov_b32 m0, {WOBUF + 1024*k}")
        if k: A("s_add_u32 s12, s12, 4096")
        else: A("s_nop 0")
    A(f"buffer_load_dwordx4 v62, {srdT}, s12 offen offset:{1024*(k%4)} {SPOL} lds")

LBL("L_kv0")
if OPT["CPF"]:
    C("wave 3: pull the kernel's code into L2 (later instruction fetches then miss no further than L2)")
    A(f"s_cmp_lg_u32 {sWAVE}, 3")
    A("s_cbranch_scc1 L_nocpf")
    A("s_getpc_b64 s[12:13]")
    LBL("L_pc")
    A(f"s_sub_u32 s12, s12, L_pc-{NAME}_kernel")
    A("s_subb_u32 s13, s13, 0")
    A(f"v_lshlrev_b32 v62, 4, {v(vLANE)}")
    for k in range(13):
        if k % 4 == 0 and k: A("v_add_u32 v62, 0x1000, v62")
        A(f"global_load_dwordx4 {vr(64+4*k,4)}, v62, s[12:13] offset:{1024*(k%4)}")
    LBL("L_nocpf")
A("s_barrier")
LBL("L_kv")
if OPT["PRIO"]: A("s_setprio 2")
issue_K(0); issue_V(0)
A(f"v_add_u32 {v(vKV)}, 0x200000, {v(vKV)}")
if OPT["PACE"]: A("s_waitcnt vmcnt(0)")
issue_K(1); issue_V(1)
A(f"v_add_u32 {v(vKV)}, 0x200000, {v(vKV)}")
if OPT["PRIO"]: A("s_setprio 0")
stamp(7)
C("diag masks")
A(f"v_and_b32 {v(vT0)}, 1, {v(vLANE)}")
A(f"v_lshlrev_b32 {v(vT0)}, 4, {v(vT0)}")
A(f"v_mov_b32 {v(vT1)}, 0xffff")
A(f"v_lshlrev_b32 {v(vT1)}, {v(vT0)}, {v(vT1)}")
A(f"v_bfe_u32 {v(vT0)}, {v(vLANE)}, 1, 2")
for k in range(4):
    A(f"v_cmp_eq_u32 vcc, {k}, {v(vT0)}")
    A("s_nop 1")
    A(f"v_cndmask_b32 {v(MASK+k)}, 0, {v(vT1)}, vcc")
A(f"s_mov_b32 {sC}, {f32(0.0625*math.log2(math.e))}")
for k in range(8): A(f"v_mov_b32 {v(ACC+k)}, 0")
A(f"v_mov_b32 {v(vMR)}, 0xff800000")
A(f"v_mov_b32 {v(vMC)}, 0xff800000")
A(f"v_mov_b32 {v(vL)}, 0")
A(f"v_mov_b32 {v(vZ)}, 0")
A(f"v_mov_b32 {v(vONE)}, 1")
A(f"s_mov_b32 {sTK0}, 0"); A(f"s_mov_b32 {sTK1}, 0"); A(f"s_mov_b32 {sPEND}, 0")
A(f"s_mov_b32 {sCNT}, 8")
tagcalc()
C("wait for q (LDS flag, cleared before the start barrier)")
A("s_mov_b32 s12, 4000000")
LBL("L_qwait")
A(f"ds_read_b32 {v(vT0)}, {v(vZ)} offset:{QFLAG}")
A("s_waitcnt lgkmcnt(0)")
A(f"v_readfirstlane_b32 s13, {v(vT0)}")
A("s_cmp_eq_u32 s13, 1")
A("s_cbranch_scc1 L_qready")
A("s_sleep 1")
A("s_sub_u32 s12, s12, 1")
A("s_cmp_lg_u32 s12, 0")
A("s_cbranch_scc1 L_qwait")
LBL("L_qready")
A(f"ds_read_b32 {v(vT0)}, {v(vZ)} offset:{CBASE}")
A(f"v_lshlrev_b32 {v(vT1)}, 4, {v(vN)}")
for h in range(2):
    for hf in range(2):
        A(f"ds_read_b128 {vr(Q+8*h+4*hf,4)}, {v(vT1)} offset:{QBF+512*h+256*hf}")
A("s_waitcnt lgkmcnt(0)")
A(f"v_readfirstlane_b32 {sCB}, {v(vT0)}")
stamp(1)

def tile(st, tag, drain=False):
    K = STG + 32*st
    V = K + 16
    sTK = sTK0 if st == 0 else sTK1
    if OPT["DYN"] and not drain:
        if OPT["NACT"] < 16:
            A(f"s_cmp_ge_u32 {sWAVE}, {OPT['NACT']}")
            A(f"s_cbranch_scc1 L_term{tag}")
        A("s_mov_b64 exec, 1")
        A(f"ds_add_rtn_u32 {v(vTK)}, {v(vZ)}, {v(vONE)} offset:{TKT}")
        A("s_mov_b64 exec, -1")
    if OPT["DYN"] and not drain:
        LBL(f"L_chk{tag}")
        A("s_waitcnt lgkmcnt(0)")
        A(f"v_readfirstlane_b32 s14, {v(vTK)}")
        A("s_and_b32 s13, s14, 0xffff")
        A("s_bfe_u32 s6, s14, 0x30010")
        A("s_lshr_b32 s12, s14, 19")
        A("s_lshl_b32 s6, 1, s6")
        A("s_cmp_ge_u32 s13, s6")
        A(f"s_cbranch_scc1 L_slow{tag}")
        LBL(f"L_ok{tag}")
        A("s_add_u32 s12, s12, s13")
        A("s_lshl_b32 s12, s12, 12")
        A(f"v_add_u32 {v(vKV)}, s12, {v(vLP)}")
    A("s_waitcnt vmcnt(%d)" % (0 if drain else 12))
    for hf in range(2):
        for k in range(4):
            for grp in range(2):
                for h in range(2):
                    d = D + 2*grp + h
                    src2 = "0" if (hf == 0 and k == 0) else v(d)
                    A(f"v_dot2_f32_bf16 {v(d)}, {v(K+8*grp+4*hf+k)}, {v(Q+8*h+4*hf+k)}, {src2}")
    if not drain: issue_K(st)
    else: A("s_nop 2")
    A(f"v_add_f32_dpp {v(vTA)}, {v(D+0)}, {v(D+0)} row_ror:8 row_mask:0xf bank_mask:0x3")
    A(f"v_add_f32_dpp {v(vTB)}, {v(D+2)}, {v(D+2)} row_ror:8 row_mask:0xf bank_mask:0x3")
    A(f"v_add_f32_dpp {v(vTA)}, {v(D+1)}, {v(D+1)} row_ror:8 row_mask:0xf bank_mask:0xc")
    A(f"v_add_f32_dpp {v(vTB)}, {v(D+3)}, {v(D+3)} row_ror:8 row_mask:0xf bank_mask:0xc")
    for pat in ["row_half_mirror", "quad_perm:[1,0,3,2]", "quad_perm:[2,3,0,1]"]:
        A("s_nop 0")
        A(f"v_add_f32_dpp {v(vTA)}, {v(vTA)}, {v(vTA)} {pat} {DPPALL}")
        A(f"v_add_f32_dpp {v(vTB)}, {v(vTB)}, {v(vTB)} {pat} {DPPALL}")
    A(f"v_cvt_pk_bf16_f32 {v(vPK)}, {v(vTA)}, {v(vTB)}")
    A(f"v_lshlrev_b32 {v(vSA)}, 16, {v(vPK)}")
    A(f"v_and_b32 {v(vSB)}, 0xffff0000, {v(vPK)}")
    A(f"v_max_f32 {v(vTM)}, {v(vSA)}, {v(vSB)}")
    A(f"v_cmp_gt_f32 vcc, {v(vTM)}, {v(vMR)}")
    A(f"s_cbranch_vccz L_nomax{tag}")
    C("new running max: rescale")
    A(f"v_max_f32 {v(vTM)}, {v(vTM)}, {v(vMR)}")
    xrow_allreduce("v_max_f32", [vTM], [vT0])
    A(f"v_sub_f32 {v(vT1)}, {v(vMR)}, {v(vTM)}")
    A(f"v_mul_f32 {v(vT1)}, {sC}, {v(vT1)}")
    A(f"v_exp_f32 {v(vT1)}, {v(vT1)}")
    A(f"v_mov_b32 {v(vMR)}, {v(vTM)}")
    A(f"v_mul_f32 {v(vMC)}, {sC}, {v(vTM)}")
    A(f"v_mul_f32 {v(vL)}, {v(vL)}, {v(vT1)}")
    A(f"v_mov_b32 {v(vT2)}, {v(vT1)}")
    A("s_nop 1")
    A(f"v_mov_b32_dpp {v(vT2)}, {v(vT1)} row_ror:8 row_mask:0x3 bank_mask:0xc")
    A(f"v_mov_b32_dpp {v(vT2)}, {v(vT1)} row_ror:8 row_mask:0xc bank_mask:0x3")
    for k in range(8): A(f"v_mul_f32 {v(ACC+k)}, {v(ACC+k)}, {v(vT2)}")
    LBL(f"L_nomax{tag}")
    A(f"v_fma_f32 {v(vPA)}, {v(vSA)}, {sC}, -{v(vMC)}")
    A(f"v_fma_f32 {v(vPB)}, {v(vSB)}, {sC}, -{v(vMC)}")
    A(f"v_exp_f32 {v(vPA)}, {v(vPA)}")
    A(f"v_exp_f32 {v(vPB)}, {v(vPB)}")
    A("s_nop 0")
    A(f"v_cvt_pk_bf16_f32 {v(vT0)}, {v(vPA)}, {v(vPA)}")
    A(f"v_cvt_pk_bf16_f32 {v(vT1)}, {v(vPB)}, {v(vPB)}")
    for d in range(4): A(f"v_and_b32 {v(AOP+d)}, {v(vT0)}, {v(MASK+d)}")
    for d in range(4): A(f"v_and_b32 {v(AOP+4+d)}, {v(vT1)}, {v(MASK+d)}")
    A(f"v_add_f32 {v(vL)}, {v(vL)}, {v(vPA)}")
    A(f"v_add_f32 {v(vL)}, {v(vL)}, {v(vPB)}")
    A("s_waitcnt vmcnt(12)" if not drain else "s_nop 0")
    A(f"v_mfma_f32_16x16x32_bf16 {vr(ACC,4)}, {vr(AOP,4)}, {vr(V,4)}, {vr(ACC,4)}")
    A(f"v_mfma_f32_16x16x32_bf16 {vr(ACC+4,4)}, {vr(AOP,4)}, {vr(V+4,4)}, {vr(ACC+4,4)}")
    A(f"v_mfma_f32_16x16x32_bf16 {vr(ACC,4)}, {vr(AOP+4,4)}, {vr(V+8,4)}, {vr(ACC,4)}")
    A(f"v_mfma_f32_16x16x32_bf16 {vr(ACC+4,4)}, {vr(AOP+4,4)}, {vr(V+12,4)}, {vr(ACC+4,4)}")
    if drain: return
    issue_V(st)
    if OPT["DYN"]:
        A(f"s_cmp_eq_u32 {sPEND}, 0")
        A(f"s_cbranch_scc1 L_nopend{tag}")
        C("the chunk fetched from the head's global counter becomes NEXT")
        A("s_waitcnt lgkmcnt(0)")
        RS, N16, LGS = OPT['RS'], OPT['N16'], OPT['LGS']
        A(f"s_sub_u32 {sFET}, {sFET}, {sCB}")
        A(f"s_min_u32 {sFET}, {sFET}, 0x4000")
        A(f"s_lshl_b32 s12, {sFET}, 4")
        A(f"s_add_u32 s12, s12, {RS*512}")
        A(f"s_lshl_b32 s13, {sFET}, {LGS}")
        A(f"s_add_u32 s13, s13, {RS*512 + 16*N16 - (N16<<LGS)}")
        A(f"s_cmp_lt_u32 {sFET}, {N16}")
        A("s_cselect_b32 s12, s12, s13")
        A(f"s_cselect_b32 s13, 4, {LGS}")
        A("s_lshl_b32 s13, s13, 16")
        A("s_lshl_b32 s6, s12, 19")
        A("s_or_b32 s13, s13, s6")
        A("s_cmp_ge_u32 s12, 8192")
        A(f"s_cselect_b32 {sFET}, 0xfff80001, s13")
        A(f"v_mov_b32 {v(vT0)}, {sFET}")
        A(f"ds_write_b32 {v(vZ)}, {v(vT0)} offset:{NEXT}")
        A(f"s_mov_b32 {sPEND}, 0")
        LBL(f"L_nopend{tag}")
    if not OPT["DYN"]:
        A(f"v_add_u32 {v(vKV)}, 0x200000, {v(vKV)}")

LBL("L_loop")
tile(0, "0")
tile(1, "1")
def slow(tag, sTK):
    LBL(f"L_slow{tag}")
    A("s_cmp_eq_u32 s12, 0x1fff")
    A(f"s_cbranch_scc1 L_term{tag}")
    A("s_cmp_eq_u32 s13, s6")
    A(f"s_cbranch_scc1 L_inst{tag}")
    C("chunk exhausted, another wave installs the next one: draw again")
    A("s_sleep 1")
    A("s_mov_b64 exec, 1")
    A(f"ds_add_rtn_u32 {v(vTK)}, {v(vZ)}, {v(vONE)} offset:{TKT}")
    A("s_mov_b64 exec, -1")
    A(f"s_branch L_chk{tag}")
    LBL(f"L_term{tag}")
    A(f"s_branch L_drain{tag}")
    LBL(f"L_inst{tag}")
    A("s_mov_b32 s13, 4000000")
    LBL(f"L_instw{tag}")
    A(f"ds_read_b32 {v(vT0)}, {v(vZ)} offset:{NEXT}")
    A("s_waitcnt lgkmcnt(0)")
    A(f"v_readfirstlane_b32 s12, {v(vT0)}")
    A("s_cmp_lg_u32 s12, -1")
    A(f"s_cbranch_scc1 L_instg{tag}")
    A("s_sleep 1")
    A("s_sub_u32 s13, s13, 1")
    A("s_cmp_lg_u32 s13, 0")
    A(f"s_cbranch_scc1 L_instw{tag}")
    A("s_mov_b32 s12, 0xfff80001")
    LBL(f"L_instg{tag}")
    A("s_cmp_eq_u32 s12, 0xfff80001")
    A(f"s_cbranch_scc0 L_instv{tag}")
    A(f"v_mov_b32 {v(vT0)}, s12")
    A(f"ds_write_b32 {v(vZ)}, {v(vT0)} offset:{TKT}")
    A(f"s_branch L_term{tag}")
    LBL(f"L_instv{tag}")
    C("valid chunk s12 (packed): install it (this wave takes slot 0), then produce the next one")
    A(f"s_cmp_lt_u32 s12, {((OPT['RS']-1)*512)<<19}")
    A(f"s_cbranch_scc1 L_insts{tag}")
    A(f"v_mov_b32 {v(vT1)}, -1")
    A(f"s_mov_b32 {sFET}, 1")
    A(f"s_atomic_add {sFET}, {pWS}, {sCOFF} glc")
    A(f"s_mov_b32 {sPEND}, 1")
    A(f"s_branch L_instx{tag}")
    LBL(f"L_insts{tag}")
    A(f"s_add_u32 s13, s12, {512<<19}")
    A(f"v_mov_b32 {v(vT1)}, s13")
    LBL(f"L_instx{tag}")
    A(f"ds_write_b32 {v(vZ)}, {v(vT1)} offset:{NEXT}")
    A("s_or_b32 s13, s12, 1")
    A(f"v_mov_b32 {v(vT0)}, s13")
    A(f"ds_write_b32 {v(vZ)}, {v(vT0)} offset:{TKT}")
    A("s_lshr_b32 s12, s12, 19")
    A("s_mov_b32 s13, 0")
    A(f"s_branch L_ok{tag}")
if OPT["DYN"]:
    A("s_branch L_loop")
    slow("0", sTK0)
    slow("1", sTK1)
    LBL("L_drain1")
    tile(1, "d1", drain=True)
    tile(0, "d1b", drain=True)
    A("s_branch L_loopend")
    LBL("L_drain0")
    tile(0, "d0", drain=True)
    tile(1, "d0b", drain=True)
else:
    A(f"s_sub_u32 {sCNT}, {sCNT}, 1")
    A(f"s_cmp_lg_u32 {sCNT}, 0")
    A("s_cbranch_scc1 L_loop")
LBL("L_loopend")
stamp(2)

C("===== T1: combine the 16 waves of this workgroup =====")
xrow_allreduce("v_add_f32", [vL], [vT0])
C("O -> LDS : OBUF + wave*2048 + ((l>>5)*256 + 8n + 4*((l>>4)&1))*4")
A(f"v_lshrrev_b32 {v(vT1)}, 5, {v(vLANE)}")
A(f"v_lshlrev_b32 {v(vT1)}, 10, {v(vT1)}")
A(f"v_lshl_add_u32 {v(vT1)}, {v(vN)}, 5, {v(vT1)}")
A(f"v_and_b32 {v(vT2)}, 1, {v(vG)}")
A(f"v_lshl_add_u32 {v(vT1)}, {v(vT2)}, 4, {v(vT1)}")
A(f"s_lshl_b32 s12, {sWAVE}, 11")
A(f"v_add_u32 {v(vT1)}, s12, {v(vT1)}")
A(f"ds_write_b128 {v(vT1)}, {vr(ACC,4)} offset:{OBUF}")
A(f"ds_write_b128 {v(vT1)}, {vr(ACC+4,4)} offset:{OBUF+512}")
C("(Mc,l) from lanes 0 and 8: ML + h*128 + wave*8")
A(f"v_lshlrev_b32 {v(vT1)}, 4, {v(vLANE)}")
A(f"s_lshl_b32 s12, {sWAVE}, 3")
A(f"v_add_u32 {v(vT1)}, s12, {v(vT1)}")
A("s_mov_b64 exec, 0x101")
A(f"ds_write_b64 {v(vT1)}, {vr(vMC,2)} offset:{ML}")
A("s_mov_b64 exec, -1")
A("s_waitcnt vmcnt(0) lgkmcnt(0)")
A("s_barrier")
A(f"s_cmp_ge_u32 {sWAVE}, 8")
A("s_cbranch_scc1 L_t3_check")
A(f"s_lshl_b32 s12, s2, 13")
A("s_add_u32 s60, s42, s12"); A("s_addc_u32 s61, s43, 0")
A("v_lshrrev_b32 v60, 8, v0")
A("v_lshlrev_b32 v60, 7, v60")
for k in range(8):
    A(f"ds_read_b128 {vr(64+4*k,4)}, v60 offset:{ML+16*k}")
A("v_lshlrev_b32 v62, 2, v0")
for k in range(16):
    A(f"ds_read_b32 {v(96+k)}, v62 offset:{OBUF+2048*k}")
A(f"v_mov_b32 v45, {sTAG}"); A(f"v_mov_b32 v41, {sTAG}"); A(f"v_mov_b32 v43, {sTAG}")
A("s_waitcnt lgkmcnt(15)")
A("s_waitcnt lgkmcnt(0)")
C("M_k = v64+2k, l_k = v65+2k")
A("v_max3_f32 v40, v64, v66, v68")
for k in range(3, 15, 2): A(f"v_max3_f32 v40, v40, {v(64+2*k)}, {v(66+2*k)}")
A("v_max_f32 v40, v40, v94")
for k in range(16): A(f"v_sub_f32 {v(64+2*k)}, {v(64+2*k)}, v40")
for k in range(16): A(f"v_exp_f32 {v(64+2*k)}, {v(64+2*k)}")
A("v_mul_f32 v44, v64, v96")
for k in range(1, 16): A(f"v_fmac_f32 v44, {v(64+2*k)}, {v(96+k)}")
A("v_lshlrev_b32 v62, 3, v0")
A("global_store_dwordx2 v62, v[44:45], s[60:61] sc1")
A("v_mul_f32 v42, v64, v65")
for k in range(1, 16): A(f"v_fmac_f32 v42, {v(64+2*k)}, {v(65+2*k)}")
A("v_and_b32 v62, 255, v0")
A("v_lshrrev_b32 v60, 4, v0")
A("v_add_u32 v60, 0x1000, v60")
A("v_cmp_eq_u32 vcc, 0, v62")
A("s_and_saveexec_b64 s[62:63], vcc")
A("s_cbranch_execz L_t1_noml")
A("global_store_dwordx4 v60, v[40:43], s[60:61] sc1")
LBL("L_t1_noml")
A("s_mov_b64 exec, s[62:63]")
A(f"s_cmp_lg_u32 {sWAVE}, 0")
A("s_cbranch_scc1 L_t3_check")

C("===== T2 (wave 0): combine 32 splits for 16 o-dims, out-projection =====")
C("wo B operands: lane(n,g): WOBUF + (4jj+g)*896 + cb*256 + 16n")
A(f"v_mul_u32_u24 v60, 896, {v(vG)}")
A(f"v_lshl_add_u32 v60, {v(vN)}, 4, v60")
for jj in range(4):
    for cb in range(4):
        A(f"ds_read_b128 {vr(64+16*jj+4*cb,4)}, v60 offset:{WOBUF+jj*3584+cb*256}")
C("O granule voffset: (64*sq + hk)*8192 + (16i + d)*8 ; + k*65536")
A(f"v_lshlrev_b32 v60, 19, {v(vG)}")
A(f"v_lshl_add_u32 v60, {v(vN)}, 3, v60")
A(f"s_lshl_b32 s13, {sHK}, 13")
A(f"s_lshl_b32 s14, {sI}, 7")
A("s_add_u32 s13, s13, s14")
A("v_add_u32 v60, s13, v60")
C("ML voffset: ((lane&31)*8 + hk)*8192 + 4096 + hh*16")
A(f"v_and_b32 v62, 31, {v(vLANE)}")
A("v_lshlrev_b32 v62, 16, v62")
A(f"s_lshl_b32 s13, {sHK}, 13")
A(f"s_lshr_b32 s14, {sI}, 4")
A("s_lshl_b32 s14, s14, 4")
A("s_add_u32 s13, s13, s14")
A("s_add_u32 s13, s13, 0x1000")
A("v_add_u32 v62, s13, v62")
for k in range(8): A(f"s_mov_b32 s{64+k}, {k*65536}")
loads = [f"buffer_load_dwordx2 {vr(16+2*k,2)}, v60, {srdWS}, s{64+k} offen sc1" for k in range(8)]
loads.append(f"buffer_load_dwordx4 v[32:35], v62, {srdWS}, 0 offen sc1")
poll("t2", loads, [17+2*k for k in range(8)] + [33, 35], 40)
stamp(3)
C("weights")
A("v_mov_b32 v36, v32")
row_allreduce("v_max_f32", [36])
xrow_allreduce("v_max_f32", [36], [37], which=(16,))
A("v_sub_f32 v32, v32, v36")
A("v_exp_f32 v32, v32")
A("s_nop 0")
A("v_mul_f32 v34, v34, v32")
row_allreduce("v_add_f32", [34])
xrow_allreduce("v_add_f32", [34], [37], which=(16,))
A("v_rcp_f32 v34, v34")
A(f"v_lshlrev_b32 v62, 2, {v(vLANE)}")
A("v_mul_f32 v32, v32, v34")
A("s_mov_b32 exec_hi, 0")
A(f"ds_write_b32 v62, v32 offset:{WGT}")
A("s_mov_b64 exec, -1")
A(f"v_lshlrev_b32 v62, 5, {v(vG)}")
A("s_waitcnt lgkmcnt(0)")
A(f"ds_read_b128 v[40:43], v62 offset:{WGT}")
A(f"ds_read_b128 v[44:47], v62 offset:{WGT+16}")
A("s_waitcnt lgkmcnt(0)")
A("v_mul_f32 v36, v40, v16")
for k in range(1, 8): A(f"v_fmac_f32 v36, {v(40+k)}, {v(16+2*k)}")
xrow_allreduce("v_add_f32", [36], [37])
A("v_cvt_pk_bf16_f32 v36, v36, v36")
A(f"v_lshlrev_b32 v62, 2, {v(vG)}")
for jj in range(4):
    A(f"v_add_u32 v61, {16*jj}, v62")
    A(f"ds_bpermute_b32 {v(40+jj)}, v61, v36")
A("s_waitcnt lgkmcnt(0)")
for jj in range(4):
    for d in range(4):
        A(f"v_and_b32 {v(44+4*jj+d)}, {v(40+jj)}, {v(MASK+d)}")
A("s_nop 1")
for jj in range(4):
    for cb in range(4):
        src = "0" if jj == 0 else vr(8+4*cb, 4)
        A(f"v_mfma_f32_16x16x32_bf16 {vr(8+4*cb,4)}, {vr(44+4*jj,4)}, {vr(64+16*jj+4*cb,4)}, {src}")
C("a-vector store address: AVEC + wg*4096 + (8n+4G)*8 + cb*1024")
A(f"v_lshlrev_b32 v62, 6, {v(vN)}")
A(f"v_lshl_add_u32 v62, {v(vG)}, 5, v62")
A("s_lshl_b32 s13, s2, 12")
A(f"s_add_u32 s13, s13, {AVEC}")
A("v_add_u32 v62, s13, v62")
for t in range(8):
    A(f"v_mov_b32 {v(25+4*t)}, {sTAG}")
    A(f"v_mov_b32 {v(27+4*t)}, {sTAG}")
A("s_nop 3")
for cb in range(4):
    for hfp in range(2):
        t = 2*cb + hfp
        A(f"v_mov_b32 {v(24+4*t)}, {v(8+4*cb+2*hfp)}")
        A(f"v_mov_b32 {v(26+4*t)}, {v(8+4*cb+2*hfp+1)}")
A("s_mov_b32 exec_hi, 0")
for cb in range(4):
    if cb == 3: A("s_mov_b64 exec, 0x00ff00ff")
    for hfp in range(2):
        t = 2*cb + hfp
        A(f"global_store_dwordx4 v62, {vr(24+4*t,4)}, {pWS} offset:{cb*1024+16*hfp} sc1")
A("s_mov_b64 exec, -1")
stamp(4)

LBL("L_t3_check")
A(f"s_cmp_lt_u32 {sPI}, 28")
A("s_cbranch_scc1 L_end")
A(f"s_sub_u32 s6, {sPI}, 28")
A("s_lshl_b32 s6, s6, 3")
A(f"s_add_u32 s6, s6, {sPHK}")
A("s_cmp_ge_u32 s6, 28")
A("s_cbranch_scc1 L_end")
C("===== T3: final reduce for columns 16f..16f+15 =====")
A("v_lshrrev_b32 v60, 3, v0")
A("v_lshlrev_b32 v60, 12, v60")
A("v_and_b32 v61, 7, v0")
A("v_lshl_add_u32 v60, v61, 4, v60")
A("s_lshl_b32 s13, s6, 7")
A("v_add_u32 v60, s13, v60")
C("b2 for lanes 0..7 (dword = 2 cols)")
A("s_lshl_b32 s13, s6, 5")
A("v_lshlrev_b32 v61, 2, v61")
A("v_add_u32 v61, s13, v61")
A(f"global_load_dword v56, v61, {pB2}")
A(f"s_mov_b32 s64, {AVEC}"); A(f"s_mov_b32 s65, {AVEC+128*VSTR}"); A(f"s_mov_b32 s66, {BVEC}"); A(f"s_mov_b32 s67, {BVEC+128*VSTR}")
A(f"s_cmp_ge_u32 {sWAVE}, 12")
A("s_cbranch_scc1 L_t3_p3")
loads = [f"buffer_load_dwordx4 {vr(16+4*k,4)}, v60, {srdWS}, s{64+k} offen sc1" for k in range(4)]
poll("t3a", loads, [17+2*k for k in range(8)], 40)
A("s_branch L_t3_sum")
LBL("L_t3_p3")
A("v_mov_b32 v28, 0"); A("v_mov_b32 v30, 0")
poll("t3b", loads[:3], [17+2*k for k in range(6)], 40)
LBL("L_t3_sum")
stamp(5)
A("v_add_f32 v40, v16, v20"); A("v_add_f32 v41, v18, v22"); A("v_add_f32 v42, v24, v28"); A("v_add_f32 v43, v26, v30")
for r in range(40, 44): A(f"v_add_f32_dpp {v(r)}, {v(r)}, {v(r)} row_ror:8 {DPPALL}")
xrow_allreduce("v_add_f32", [40, 41, 42, 43], [44, 45, 46, 47])
A(f"v_lshlrev_b32 v62, 4, {v(vLANE)}")
A(f"s_lshl_b32 s13, {sWAVE}, 7")
A("v_add_u32 v62, s13, v62")
A("s_mov_b64 exec, 0xff")
A(f"ds_write_b128 v62, v[40:43] offset:{RED}")
A("s_mov_b64 exec, -1")
A("s_waitcnt lgkmcnt(0)")
A("s_barrier")
A(f"s_cmp_lg_u32 {sWAVE}, 0")
A("s_cbranch_scc1 L_end")
A(f"v_lshlrev_b32 v62, 4, {v(vLANE)}")
A(f"ds_read_b128 v[40:43], v62 offset:{RED}")
A(f"ds_read_b128 v[44:47], v62 offset:{RED+1024}")
A("v_mov_b32 v62, 0")
A(f"ds_read_b32 v57, v62 offset:{GATE}")
A("s_waitcnt lgkmcnt(0)")
for k in range(4): A(f"v_add_f32 {v(40+k)}, {v(40+k)}, {v(44+k)}")
for r in range(40, 44): A(f"v_add_f32_dpp {v(r)}, {v(r)}, {v(r)} row_ror:8 {DPPALL}")
xrow_allreduce("v_add_f32", [40, 41, 42, 43], [44, 45, 46, 47])
C("epilogue with the reference's bf16 roundings")
A("v_cvt_pk_bf16_f32 v40, v40, v41")
A("v_cvt_pk_bf16_f32 v42, v42, v43")
unpack(44, 45, 42); unpack(46, 47, 56)
A("v_add_f32 v44, v44, v46"); A("v_add_f32 v45, v45, v47")
A("v_cvt_pk_bf16_f32 v42, v44, v45")
A("v_sub_f32 v58, 1.0, v57")
rnd(58)
unpack(44, 45, 40)
A("v_mul_f32 v44, v44, v57"); A("v_mul_f32 v45, v45, v57")
A("v_cvt_pk_bf16_f32 v40, v44, v45")
unpack(46, 47, 42)
A("v_mul_f32 v46, v46, v58"); A("v_mul_f32 v47, v47, v58")
A("v_cvt_pk_bf16_f32 v42, v46, v47")
unpack(44, 45, 40); unpack(46, 47, 42)
A("v_add_f32 v44, v44, v46"); A("v_add_f32 v45, v45, v47")
A("v_cvt_pk_bf16_f32 v40, v44, v45")
A("s_mov_b64 exec, 0xff")
A(f"global_store_dword v61, v40, {pOUT}")
A("s_cmp_lg_u32 s6, 0")
A("s_cbranch_scc1 L_noepoch")
A(f"s_add_u32 {sEP}, {sEP}, 1")
A(f"v_mov_b32 v44, {sEP}")
A(f"v_mov_b32 v45, {EPOCH}")
A("s_mov_b64 exec, 1")
A(f"global_store_dword v45, v44, {pWS} sc1")
LBL("L_noepoch")
A("s_mov_b64 exec, -1")
stamp(6)
LBL("L_end")
A("s_endpgm")
if OPT["CPF"]:
    L.append(".fill 1024, 4, 0xBF800000")

hdr = open("cdna_kernels/%s.s.ref" % NAME).read().split("; Override launch geometry")[0]
out = hdr
out += "; generated by gen/gen.py (hand-written generator)\n"
out += f"; @launch grid=(256,1,1) block=(1024,1,1) lds={LDS_BYTES}\n"
out += '.amdgcn_target "amdgcn-amd-amdhsa--gfx950"\n.text\n'
out += f".globl {NAME}_kernel\n.p2align 8\n.type {NAME}_kernel,@function\n"
out += "\n".join(L) + "\n"
out += f""".section .rodata,"a"
.p2align 6
.amdhsa_kernel {NAME}_kernel
  .amdhsa_next_free_vgpr 128
  .amdhsa_next_free_sgpr 96
  .amdhsa_accum_offset 128
  .amdhsa_group_segment_fixed_size 0
  .amdhsa_kernarg_size 112
  .amdhsa_user_sgpr_count 2
  .amdhsa_user_sgpr_kernarg_segment_ptr 1
  .amdhsa_system_sgpr_workgroup_id_x 1
.end_amdhsa_kernel
"""
open(sys.argv[1], "w").write(out)
print("LDS", LDS_BYTES, "instrs", sum(1 for l in L if l.startswith("    ") and not l.strip().startswith(";")))
```

```python
import struct, sys, math

NAME = "gated_mix__gqa_block_cached__dense_activation_gelu__decode"
def f32(x): return "0x%08x" % struct.unpack("<I", struct.pack("<f", x))[0]

OPT = dict(POL="nt", VPOL="nt", SLEEP=2, STAMP=0, SPOL="nt", PRIO=1, NACT=4, RSR=48, HP=1, NOTAIL=0, PT=4, W16=1, CWO=0)
for a in sys.argv[2:]:
    k, v_ = a.split("=")
    OPT[k] = v_ if not v_.lstrip("-").isdigit() else int(v_)
SPOL = OPT["SPOL"].replace("_", " ") if OPT["SPOL"] != "none" else ""
HP = OPT["HP"]; LHP = HP.bit_length()-1; NG = 8//HP; NP = 32*HP; WPH = 16//HP
NACT = OPT["NACT"]; CW = OPT["CWO"] or NACT//HP; LCW = CW.bit_length()-1; ROW = NP*CW; LROW = ROW.bit_length()-1
NR = 8192//ROW; R0 = 2*WPH//CW; RSr = OPT["RSR"]*NR//64
MD = max(1, OPT["PT"]//CW); ML_ = max(1, 8//CW)
assert CW >= 1 and (NR-RSr) % MD == 0 and RSr-R0-ML_ > 0 and RSr-R0-ML_ < 128

L = []
def A(s): L.append("    " + s)
def LBL(s): L.append(s + ":")
def C(s): L.append("    ; " + s)

QBF, TKB, GATE, ML, WGT, RED, WOBUF, OBUF = 0, 2048, 2096, 2176, 2432, 2688, 4736, 19456
TKT, NEXT, CBASE, QFLAG = TKB, TKB+4, TKB+8, TKB+12
LDS_BYTES = OBUF + 32768
PART = 0
AVEC, BVEC, VSTR = 0x400000, 0x500000, 4096
QX, CNTB, EPOCH = 0x600000, 0x610000, 0x1F00
sWAVE, sPG, sJ, sC, sTAG, sJJ, sEP = "s3", "s4", "s5", "s9", "s10", "s11", "s15"
sBASE, sHW, sX, sIDX, sPEND, sFET, sCOFF, sCB, sHT, sSL, sSEL, sCB2 = "s78", "s79", "s80", "s81", "s82", "s83", "s84", "s85", "s86", "s87", "s88", "s89"
pX, pK, pV, pWQ, pWO, pW1, pB1, pW2, pB2, pGW, pOUT, pDBG, pWS = (
    "s[16:17]", "s[18:19]", "s[20:21]", "s[22:23]", "s[24:25]", "s[28:29]", "s[30:31]",
    "s[32:33]", "s[34:35]", "s[36:37]", "s[38:39]", "s[40:41]", "s[42:43]")
srdK, srdV, srdT, srdWS = "s[44:47]", "s[48:51]", "s[52:55]", "s[56:59]"
vG, vLANE, vN = 1, 2, 3
MASK = 4
ACC = 8
Q = 16
vT2, vMR = 32, 33
vMC, vL = 34, 35
D = 36
vTA, vTB, vPK, vSA, vSB, vTM, vPA, vPB = 40, 41, 42, 43, 44, 45, 46, 47
AOP = 48
vT0, vT1, vKV, vLP = 56, 57, 58, 59
vTK, vONE, vZ = 60, 61, 62
STG = 64
def v(i): return "v%d" % i
def vr(i, n): return "v[%d:%d]" % (i, i + n - 1)
KOFF = [0, 256, 2048, 2304]
def issue_K(st):
    for k in range(4):
        A(f"buffer_load_dwordx4 {vr(STG+32*st+4*k,4)}, {v(vKV)}, {srdK}, 0 offen offset:{KOFF[k]} {OPT['POL'].replace('_',' ')}")
def issue_V(st):
    for k in range(4):
        A(f"buffer_load_dwordx4 {vr(STG+32*st+16+4*k,4)}, {v(vKV)}, {srdV}, 0 offen offset:{KOFF[k]} {OPT['VPOL'].replace('_',' ')}")
DPPALL = "row_mask:0xf bank_mask:0xf"
def row_allreduce(op, regs, pats=("quad_perm:[1,0,3,2]", "quad_perm:[2,3,0,1]", "row_half_mirror", "row_mirror")):
    for pat in pats:
        if len(regs) < 3: A("s_nop 1")
        for r in regs:
            A(f"{op}_dpp {v(r)}, {v(r)}, {v(r)} {pat} {DPPALL}")
def xrow_allreduce(op, regs, tmps, which=(32, 16)):
    for w in which:
        for r, t in zip(regs, tmps): A(f"v_mov_b32 {v(t)}, {v(r)}")
        A("s_nop 1")
        for r, t in zip(regs, tmps): A(f"v_permlane{w}_swap_b32 {v(r)}, {v(t)}")
        for r, t in zip(regs, tmps): A(f"{op} {v(r)}, {v(r)}, {v(t)}")
def poll(name, loads, tags):
    A("s_mov_b32 s12, 200000")
    LBL(f"L_poll_{name}")
    for l in loads: A(l)
    A("s_waitcnt vmcnt(0)")
    for t in tags: A(f"v_xor_b32 {v(t)}, {sTAG}, {v(t)}")
    regs = list(tags)
    while len(regs) > 1:
        nxt = []
        while len(regs) >= 3:
            A(f"v_or3_b32 {v(regs[0])}, {v(regs[0])}, {v(regs[1])}, {v(regs[2])}"); nxt.append(regs[0]); regs = regs[3:]
        if len(regs) == 2 and not nxt:
            A(f"v_or_b32 {v(regs[0])}, {v(regs[0])}, {v(regs[1])}"); nxt.append(regs[0]); regs = []
        regs = nxt + regs
    A(f"v_cmp_ne_u32 vcc, 0, {v(tags[0])}")
    A(f"s_cbranch_vccz L_done_{name}")
    A("s_mov_b64 exec, vcc")
    if OPT["SLEEP"]: A(f"s_sleep {OPT['SLEEP']}")
    A("s_sub_u32 s12, s12, 1")
    A("s_cmp_lg_u32 s12, 0")
    A(f"s_cbranch_scc1 L_poll_{name}")
    LBL(f"L_done_{name}")
    A("s_mov_b64 exec, -1")
def stamp(idx):
    if not OPT["STAMP"]: return
    A("s_memrealtime s[70:71]")
    A("s_waitcnt lgkmcnt(0)")
    A("v_mov_b32 v36, s70"); A("v_mov_b32 v37, s71")
    A("s_lshl_b32 s72, s2, 8")
    A(f"s_lshl_b32 s73, {sWAVE}, 4")
    A(f"s_add_u32 s72, s72, {0x800000 + idx*0x100000}")
    A("s_add_u32 s72, s72, s73")
    A("v_mov_b32 v38, s72")
    A("s_mov_b64 s[74:75], exec")
    A("s_mov_b64 exec, 1")
    A(f"global_store_dwordx2 v38, v[36:37], {pWS}")
    if idx == 0:
        A("s_getreg_b32 s70, hwreg(HW_REG_XCC_ID)")
        A("v_mov_b32 v36, s70")
        A(f"global_store_dword v38, v36, {pWS} offset:8")
    A("s_mov_b64 exec, s[74:75]")
def unpack(lo, hi, src):
    A(f"v_lshlrev_b32 {v(lo)}, 16, {v(src)}")
    A(f"v_and_b32 {v(hi)}, 0xffff0000, {v(src)}")
def rnd(r):
    A(f"v_cvt_pk_bf16_f32 {v(r)}, {v(r)}, {v(r)}")
    A(f"v_lshlrev_b32 {v(r)}, 16, {v(r)}")
def srd(base4, lo, hi, size):
    A(f"s_mov_b32 s{base4}, {lo}"); A(f"s_mov_b32 s{base4+1}, {hi}"); A(f"s_mov_b32 s{base4+2}, {size}"); A(f"s_mov_b32 s{base4+3}, 0x20000")
def tagcalc():
    A("s_waitcnt lgkmcnt(0)")
    A(f"s_mul_i32 {sTAG}, {sEP}, 0x9E3779B1")
    A(f"s_add_u32 {sTAG}, {sTAG}, 0x7F4A7C15")

LBL(NAME + "_kernel")
A("s_cmp_ge_u32 s2, 256")
A("s_cbranch_scc1 L_end")
A("s_load_dwordx16 s[16:31], s[0:1], 0")
A("s_load_dwordx8 s[32:39], s[0:1], 64")
A("s_load_dwordx4 s[40:43], s[0:1], 96")
A(f"v_lshrrev_b32 v1, 6, v0")
A(f"v_and_b32 {v(vLANE)}, 63, v0")
A(f"v_readfirstlane_b32 {sWAVE}, v1")
C("x = wg&7, idx = wg>>3 ; group pg serves heads pg + k*NG ; j = index inside the group")
A(f"s_and_b32 {sX}, s2, 7")
A(f"s_lshr_b32 {sIDX}, s2, 3")
A(f"s_lshr_b32 {sPG}, {sIDX}, {2+LHP}")
A(f"s_lshl_b32 {sJ}, {sX}, {2+LHP}")
A(f"s_and_b32 s6, {sIDX}, {4*HP-1}")
A(f"s_or_b32 {sJ}, {sJ}, s6")
A(f"s_and_b32 {sSEL}, {sWAVE}, {HP-1}")
A(f"s_mul_i32 {sHW}, {sSEL}, {NG}")
A(f"s_add_u32 {sHW}, {sHW}, {sPG}")
A(f"s_lshr_b32 s6, {sJ}, 5")
A(f"s_mul_i32 {sHT}, s6, {NG}")
A(f"s_add_u32 {sHT}, {sHT}, {sPG}")
A(f"s_and_b32 {sSL}, {sJ}, 31")
A(f"s_lshl_b32 {sCOFF}, {sHW}, 12")
A(f"s_add_u32 {sCOFF}, {sCOFF}, {CNTB}")
A(f"v_and_b32 {v(vN)}, 15, {v(vLANE)}")
A(f"v_lshrrev_b32 {v(vG)}, 4, {v(vLANE)}")
A(f"v_lshlrev_b32 {v(vLP)}, 9, {v(vG)}")
A(f"v_lshl_add_u32 {v(vLP)}, {v(vN)}, 4, {v(vLP)}")
C("column layout: local tile u -> tile (u/CW)*ROW + CW*j + u%CW ; first u = wave/HP")
A(f"s_lshr_b32 s7, {sWAVE}, {LHP}")
A(f"s_lshr_b32 s6, s7, {LCW}")
A(f"s_lshl_b32 s6, s6, {LROW}")
A(f"s_and_b32 s7, s7, {CW-1}")
A("s_add_u32 s6, s6, s7")
A(f"s_lshl_b32 {sBASE}, {sJ}, {LCW}")
A(f"s_add_u32 s6, s6, {sBASE}")
A("s_lshl_b32 s6, s6, 12")
A(f"v_add_u32 {v(vKV)}, s6, {v(vLP)}")
A("s_waitcnt lgkmcnt(0)")
A(f"s_load_dword {sEP}, {pWS}, {EPOCH}")
A(f"s_lshl_b32 s6, {sHW}, 25")
A("s_add_u32 s44, s18, s6"); A("s_addc_u32 s45, s19, 0"); A("s_mov_b32 s46, 0x2000000"); A("s_mov_b32 s47, 0x20000")
A("s_add_u32 s48, s20, s6"); A("s_addc_u32 s49, s21, 0"); A("s_mov_b32 s50, 0x2000000"); A("s_mov_b32 s51, 0x20000")
srd(56, "s42", "s43", "0x40000000")
stamp(0)
A(f"s_cmp_ge_u32 {sWAVE}, 3")
A("s_cbranch_scc1 L_kv0")
if OPT["PRIO"]: A("s_setprio 3")
A(f"s_cmp_eq_u32 {sWAVE}, 1")
A("s_cbranch_scc1 L_w1")
A(f"s_cmp_eq_u32 {sWAVE}, 2")
A("s_cbranch_scc1 L_w2")

C("===== wave 0: 16-column slice of q = x @ wq ; publish ; gather the group's q =====")
C("LDS may hold an earlier launch's flags: clear them before the start barrier")
A("v_mov_b32 v62, 0")
for k in range(HP): A(f"ds_write_b32 v62, v62 offset:{QFLAG+16*k}")
srd(52, "s22", "s23", 448*8192)
A(f"v_lshrrev_b32 v60, 1, {v(vLANE)}")
A("v_lshlrev_b32 v61, 13, v60")
A(f"v_and_b32 v62, 1, {v(vLANE)}")
A("v_lshl_add_u32 v61, v62, 4, v61")
C("work counters of the group's heads: their value now is this launch's zero")
A(f"s_load_dword {sCB}, {pWS}, {sCOFF}")
if HP == 2:
    A(f"s_add_u32 s13, {sCOFF}, {NG*4096}")
    A(f"s_load_dword {sCB2}, {pWS}, s13")
A(f"s_lshl_b32 s12, {sHT}, 10")
A(f"s_lshl_b32 s13, {sSL}, 5")
A("s_add_u32 s12, s12, s13")
for k in range(14):
    A(f"buffer_load_dwordx4 {vr(64+4*k,4)}, v61, {srdT}, s12 offen {SPOL}")
    if k < 13: A(f"s_add_u32 s12, s12, {32*8192}")
A("v_lshlrev_b32 v60, 1, v60")
for k in range(14):
    A(f"global_load_ushort {v(16+k)}, v60, {pX} offset:{64*k}")
A("s_waitcnt lgkmcnt(0)")
A("s_barrier")
A("v_mov_b32 v62, 0")
A(f"s_add_u32 s13, {sBASE}, {R0*ROW}")
A("s_lshl_b32 s13, s13, 19")
A(f"s_or_b32 s13, s13, {(RSr-R0-ML_)<<12}")
A("v_mov_b32 v60, s13")
A(f"s_add_u32 s13, {sBASE}, {(RSr-ML_)*ROW}")
A("s_lshl_b32 s13, s13, 19")
A(f"s_or_b32 s13, s13, {ML_<<12}")
A("v_mov_b32 v61, s13")
for k in range(HP): A(f"ds_write_b64 v62, v[60:61] offset:{TKT+16*k}")
tagcalc()
A(f"v_mov_b32 v61, {sCB}")
A(f"ds_write_b32 v62, v61 offset:{CBASE}")
if HP == 2:
    A(f"v_mov_b32 v60, {sCB2}")
    A(f"ds_write_b32 v62, v60 offset:{CBASE+16}")
A("s_mov_b32 s13, 0x05040100")
A("s_mov_b32 s14, 0x07060302")
A("s_waitcnt vmcnt(0)")
for kp in range(7):
    A(f"v_lshl_or_b32 {v(16+2*kp)}, {v(17+2*kp)}, 16, {v(16+2*kp)}")
for kp in range(7):
    a, b = 64+8*kp, 68+8*kp
    for d in range(4):
        A(f"v_perm_b32 {v(48+2*d)}, {v(b+d)}, {v(a+d)}, s13")
        A(f"v_perm_b32 {v(49+2*d)}, {v(b+d)}, {v(a+d)}, s14")
    for c in range(8):
        A(f"v_dot2_f32_bf16 {v(40+c)}, {v(48+c)}, {v(16+2*kp)}, {'0' if kp==0 else v(40+c)}")
A("s_nop 2")
row_allreduce("v_add_f32", list(range(40, 48)), pats=("row_ror:8", "row_ror:4", "row_ror:2"))
xrow_allreduce("v_add_f32", list(range(40, 48)), list(range(48, 56)))
for k in range(4):
    A(f"v_cvt_pk_bf16_f32 {v(48+2*k)}, {v(40+2*k)}, {v(41+2*k)}")
    A(f"v_mov_b32 {v(49+2*k)}, {sTAG}")
A(f"v_lshlrev_b32 v60, 5, {v(vLANE)}")
A(f"s_lshl_b32 s13, {sSL}, 6")
A(f"s_lshl_b32 s14, {sHT}, 11")
A("s_add_u32 s13, s13, s14")
A(f"s_add_u32 s13, s13, {QX}")
A("v_add_u32 v61, s13, v60")
A(f"s_lshl_b32 s12, {sPG}, 11")
A(f"s_add_u32 s12, s12, {QX}")
A("v_add_u32 v60, s12, v60")
A("s_mov_b64 exec, 3")
A(f"global_store_dwordx4 v61, v[48:51], {pWS} sc1")
A(f"global_store_dwordx4 v61, v[52:55], {pWS} offset:16 sc1")
A("s_mov_b64 exec, -1")
stamp(11)
A(f"s_mov_b32 s13, {NG*2048}")
loads, tags = [], []
for k in range(HP):
    so = "0" if k == 0 else "s13"
    loads += [f"buffer_load_dwordx4 {vr(16+8*k,4)}, v60, {srdWS}, {so} offen sc1", f"buffer_load_dwordx4 {vr(20+8*k,4)}, v60, {srdWS}, {so} offen offset:16 sc1"]
    tags += [17+8*k, 19+8*k, 21+8*k, 23+8*k]
poll("q", loads, tags)
stamp(12)
A(f"v_lshlrev_b32 v62, 4, {v(vLANE)}")
for k in range(HP):
    b = 16+8*k
    A(f"v_mov_b32 {v(b+1)}, {v(b+2)}"); A(f"v_mov_b32 {v(b+2)}, {v(b+4)}"); A(f"v_mov_b32 {v(b+3)}, {v(b+6)}")
    A(f"ds_write_b128 v62, {vr(b,4)} offset:{QBF+1024*k}")
A("v_mov_b32 v62, 0")
A("v_mov_b32 v61, 1")
A("s_waitcnt lgkmcnt(0)")
for k in range(HP): A(f"ds_write_b32 v62, v61 offset:{QFLAG+16*k}")
A("s_branch L_kv")

LBL("L_w1")
A(f"s_cmp_ge_u32 {sIDX}, 28")
A("s_cbranch_scc1 L_gate")
C("===== wave 1: MLP slice f = 8jj..8jj+7 =====")
A(f"s_mul_i32 {sJJ}, {sX}, 28")
A(f"s_add_u32 {sJJ}, {sJJ}, {sIDX}")
srd(52, "s28", "s29", 448*3584)
A(f"s_lshl_b32 s13, {sJJ}, 4")
A(f"s_load_dwordx4 s[64:67], {pB1}, s13")
A(f"v_mul_u32_u24 v61, 3584, {v(vLANE)}")
for k in range(7):
    A(f"buffer_load_dwordx4 {vr(64+4*k,4)}, v61, {srdT}, s13 offen {SPOL}")
    if k < 6: A(f"s_add_u32 s13, s13, {64*3584}")
A(f"v_lshlrev_b32 v60, 1, {v(vLANE)}")
for k in range(7):
    A(f"global_load_ushort {v(16+k)}, v60, {pX} offset:{128*k}")
A(f"s_mul_i32 s12, {sJJ}, 7168")
A("s_add_u32 s12, s12, 3584")
A(f"v_lshlrev_b32 v62, 4, {v(vLANE)}")
A("v_add_u32 v62, s12, v62")
A("s_mov_b32 exec_hi, 0x00ffffff")
for rr in range(8):
    A(f"global_load_dwordx4 {vr(92+4*rr,4)}, v62, {pW2} offset:{rr*896-3584} {SPOL}")
A("s_mov_b64 exec, -1")
A("s_barrier")
tagcalc()
A("s_waitcnt vmcnt(8)")
for k in range(7):
    A(f"v_lshlrev_b32 {v(16+k)}, 16, {v(16+k)}")
    for d in range(4): unpack(48+2*d, 49+2*d, 64+4*k+d)
    for c in range(8):
        if k == 0: A(f"v_mul_f32 {v(40+c)}, {v(48+c)}, {v(16+k)}")
        else: A(f"v_fmac_f32 {v(40+c)}, {v(48+c)}, {v(16+k)}")
row_allreduce("v_add_f32", list(range(40, 48)))
xrow_allreduce("v_add_f32", list(range(40, 48)), list(range(48, 56)))
k2 = -2.0*math.sqrt(2.0/math.pi)*math.log2(math.e)
A(f"v_mov_b32 v56, {f32(k2)}")
A(f"s_mov_b32 s12, {f32(k2*0.044715)}")
for c in range(8):
    sreg = 64 + c//2
    if c % 2 == 0: A(f"s_lshl_b32 s13, s{sreg}, 16")
    else: A(f"s_and_b32 s13, s{sreg}, 0xffff0000")
    rnd(40+c)
    A(f"v_add_f32 {v(40+c)}, s13, {v(40+c)}")
    rnd(40+c)
for c in range(8): A(f"v_mul_f32 {v(48+c)}, {v(40+c)}, {v(40+c)}")
for c in range(8): A(f"v_fma_f32 {v(48+c)}, {v(48+c)}, s12, v56")
for c in range(8): A(f"v_mul_f32 {v(48+c)}, {v(48+c)}, {v(40+c)}")
for c in range(8): A(f"v_exp_f32 {v(48+c)}, {v(48+c)}")
for c in range(8): A(f"v_add_f32 {v(48+c)}, 1.0, {v(48+c)}")
for c in range(8): A(f"v_rcp_f32 {v(48+c)}, {v(48+c)}")
for c in range(8): A(f"v_mul_f32 {v(40+c)}, {v(40+c)}, {v(48+c)}")
for c in range(8): rnd(40+c)
A("s_waitcnt vmcnt(0)")
for rr in range(8):
    for d in range(4): unpack(48+2*d, 49+2*d, 92+4*rr+d)
    for c in range(8):
        if rr == 0: A(f"v_mul_f32 {v(64+2*c)}, {v(48+c)}, {v(40+rr)}")
        else: A(f"v_fmac_f32 {v(64+2*c)}, {v(48+c)}, {v(40+rr)}")
for c in range(8): A(f"v_mov_b32 {v(65+2*c)}, {sTAG}")
A(f"s_lshl_b32 s12, {sJJ}, 12")
A(f"s_add_u32 s12, s12, {BVEC}")
A(f"v_lshlrev_b32 v62, 6, {v(vLANE)}")
A("v_add_u32 v62, s12, v62")
A("s_mov_b32 exec_hi, 0x00ffffff")
for t in range(4):
    A(f"global_store_dwordx4 v62, {vr(64+4*t,4)}, {pWS} offset:{16*t} sc1")
A("s_mov_b64 exec, -1")
A("s_waitcnt vmcnt(0)")
A("s_branch L_kv")
LBL("L_gate")
C("gate: sigmoid(bf16(sum(bf16(x*gw))))")
for k in range(8): A(f"v_mov_b32 {v(16+k)}, 0")
A(f"v_lshlrev_b32 v62, 4, {v(vLANE)}")
A("s_mov_b32 exec_hi, 0x00ffffff")
A(f"global_load_dwordx4 v[16:19], v62, {pX}")
A(f"global_load_dwordx4 v[20:23], v62, {pGW}")
A("s_mov_b64 exec, -1")
A("s_barrier")
A("s_waitcnt vmcnt(0)")
for k in range(4):
    unpack(40, 41, 16+k); unpack(42, 43, 20+k)
    A("v_mul_f32 v40, v40, v42")
    A("v_mul_f32 v41, v41, v43")
    A("v_cvt_pk_bf16_f32 v40, v40, v41")
    unpack(42, 43, 40)
    if k == 0: A("v_add_f32 v44, v42, v43")
    else:
        A("v_add_f32 v44, v44, v42"); A("v_add_f32 v44, v44, v43")
row_allreduce("v_add_f32", [44])
xrow_allreduce("v_add_f32", [44], [45])
rnd(44)
A(f"v_mul_f32 v44, {f32(-math.log2(math.e))}, v44")
A("v_exp_f32 v44, v44")
A("s_nop 0")
A("v_add_f32 v44, 1.0, v44")
A("v_rcp_f32 v44, v44")
A("s_nop 0")
rnd(44)
A("v_mov_b32 v62, 0")
A("s_mov_b64 exec, 1")
A(f"ds_write_b32 v62, v44 offset:{GATE}")
A("s_mov_b64 exec, -1")
A("s_branch L_kv")

LBL("L_w2")
C("===== wave 2: 16 rows of wo (14336 B contiguous) straight into LDS =====")
srd(52, "s24", "s25", 4096*896)
A(f"s_lshl_b32 s12, {sHT}, 5")
A(f"s_add_u32 s12, s12, {sSL}")
A("s_mul_i32 s12, s12, 14336")
A(f"v_lshlrev_b32 v62, 4, {v(vLANE)}")
for k in range(14):
    if k % 4 == 0:
        A(f"s_mov_b32 m0, {WOBUF + 1024*k}")
        if k: A("s_add_u32 s12, s12, 4096")
        else: A("s_nop 0")
    A(f"buffer_load_dwordx4 v62, {srdT}, s12 offen offset:{1024*(k%4)} {SPOL} lds")

LBL("L_kv0")
A("s_barrier")
LBL("L_kv")
if OPT["PRIO"]: A("s_setprio 2")
issue_K(0); issue_V(0)
A(f"v_add_u32 {v(vKV)}, 0x200000, {v(vKV)}")
issue_K(1); issue_V(1)
if OPT["PRIO"]: A("s_setprio 0")
stamp(7)
C("diag masks")
A(f"v_and_b32 {v(vT0)}, 1, {v(vLANE)}")
A(f"v_lshlrev_b32 {v(vT0)}, 4, {v(vT0)}")
A(f"v_mov_b32 {v(vT1)}, 0xffff")
A(f"v_lshlrev_b32 {v(vT1)}, {v(vT0)}, {v(vT1)}")
A(f"v_bfe_u32 {v(vT0)}, {v(vLANE)}, 1, 2")
for k in range(4):
    A(f"v_cmp_eq_u32 vcc, {k}, {v(vT0)}")
    A("s_nop 1")
    A(f"v_cndmask_b32 {v(MASK+k)}, 0, {v(vT1)}, vcc")
A(f"s_mov_b32 {sC}, {f32(0.0625*math.log2(math.e))}")
for k in range(8): A(f"v_mov_b32 {v(ACC+k)}, 0")
A(f"v_mov_b32 {v(vMR)}, 0xff800000")
A(f"v_mov_b32 {v(vMC)}, 0xff800000")
A(f"v_mov_b32 {v(vL)}, 0")
A(f"s_lshl_b32 s12, {sSEL}, 4")
A(f"v_mov_b32 {v(vZ)}, s12")
A(f"v_mov_b32 {v(vONE)}, 1")
A(f"s_mov_b32 {sPEND}, 0")
tagcalc()
C("wait for q (LDS flag, cleared before the start barrier)")
A("s_mov_b32 s12, 4000000")
LBL("L_qwait")
A(f"ds_read_b32 {v(vT0)}, {v(vZ)} offset:{QFLAG}")
A("s_waitcnt lgkmcnt(0)")
A(f"v_readfirstlane_b32 s13, {v(vT0)}")
A("s_cmp_eq_u32 s13, 1")
A("s_cbranch_scc1 L_qready")
A("s_sleep 1")
A("s_sub_u32 s12, s12, 1")
A("s_cmp_lg_u32 s12, 0")
A("s_cbranch_scc1 L_qwait")
LBL("L_qready")
A(f"ds_read_b32 {v(vT0)}, {v(vZ)} offset:{CBASE}")
A(f"v_lshlrev_b32 {v(vT1)}, 4, {v(vN)}")
A(f"v_lshl_add_u32 {v(vT1)}, {v(vZ)}, 6, {v(vT1)}")
for h in range(2):
    for hf in range(2):
        A(f"ds_read_b128 {vr(Q+8*h+4*hf,4)}, {v(vT1)} offset:{QBF+512*h+256*hf}")
A("s_waitcnt lgkmcnt(0)")
A(f"v_readfirstlane_b32 {sCB}, {v(vT0)}")
stamp(1)

def tile(st, tag, drain=False):
    K = STG + 32*st
    V = K + 16
    if not drain:
        if NACT < 16:
            A(f"s_cmp_ge_u32 {sWAVE}, {NACT}")
            A(f"s_cbranch_scc1 L_drain{tag}")
        A("s_mov_b64 exec, 1")
        A(f"ds_add_rtn_u32 {v(vTK)}, {v(vZ)}, {v(vONE)} offset:{TKT}")
        A("s_mov_b64 exec, -1")
        LBL(f"L_chk{tag}")
        A("s_waitcnt lgkmcnt(0)")
        A(f"v_readfirstlane_b32 s14, {v(vTK)}")
        A("s_and_b32 s13, s14, 0xfff")
        A("s_bfe_u32 s6, s14, 0x7000c")
        A("s_lshr_b32 s12, s14, 19")
        A(f"s_lshl_b32 s6, s6, {LCW}")
        A("s_cmp_ge_u32 s13, s6")
        A(f"s_cbranch_scc1 L_slow{tag}")
        LBL(f"L_ok{tag}")
        A(f"s_lshr_b32 s6, s13, {LCW}")
        A(f"s_lshl_b32 s6, s6, {LROW}")
        A(f"s_and_b32 s13, s13, {CW-1}")
        A("s_add_u32 s12, s12, s13")
        A("s_add_u32 s12, s12, s6")
        A("s_lshl_b32 s12, s12, 12")
        A(f"v_add_u32 {v(vKV)}, s12, {v(vLP)}")
    A("s_waitcnt vmcnt(%d)" % (0 if drain else 12))
    for hf in range(2):
        for k in range(4):
            for grp in range(2):
                for h in range(2):
                    d = D + 2*grp + h
                    src2 = "0" if (hf == 0 and k == 0) else v(d)
                    A(f"v_dot2_f32_bf16 {v(d)}, {v(K+8*grp+4*hf+k)}, {v(Q+8*h+4*hf+k)}, {src2}")
    if not drain: issue_K(st)
    else: A("s_nop 2")
    A(f"v_add_f32_dpp {v(vTA)}, {v(D+0)}, {v(D+0)} row_ror:8 row_mask:0xf bank_mask:0x3")
    A(f"v_add_f32_dpp {v(vTB)}, {v(D+2)}, {v(D+2)} row_ror:8 row_mask:0xf bank_mask:0x3")
    A(f"v_add_f32_dpp {v(vTA)}, {v(D+1)}, {v(D+1)} row_ror:8 row_mask:0xf bank_mask:0xc")
    A(f"v_add_f32_dpp {v(vTB)}, {v(D+3)}, {v(D+3)} row_ror:8 row_mask:0xf bank_mask:0xc")
    for pat in ["row_half_mirror", "quad_perm:[1,0,3,2]", "quad_perm:[2,3,0,1]"]:
        A("s_nop 0")
        A(f"v_add_f32_dpp {v(vTA)}, {v(vTA)}, {v(vTA)} {pat} {DPPALL}")
        A(f"v_add_f32_dpp {v(vTB)}, {v(vTB)}, {v(vTB)} {pat} {DPPALL}")
    A(f"v_cvt_pk_bf16_f32 {v(vPK)}, {v(vTA)}, {v(vTB)}")
    A(f"v_lshlrev_b32 {v(vSA)}, 16, {v(vPK)}")
    A(f"v_and_b32 {v(vSB)}, 0xffff0000, {v(vPK)}")
    A(f"v_max_f32 {v(vTM)}, {v(vSA)}, {v(vSB)}")
    A(f"v_cmp_gt_f32 vcc, {v(vTM)}, {v(vMR)}")
    A(f"s_cbranch_vccz L_nomax{tag}")
    C("new running max: rescale")
    A(f"v_max_f32 {v(vTM)}, {v(vTM)}, {v(vMR)}")
    xrow_allreduce("v_max_f32", [vTM], [vT0])
    A(f"v_sub_f32 {v(vT1)}, {v(vMR)}, {v(vTM)}")
    A(f"v_mul_f32 {v(vT1)}, {sC}, {v(vT1)}")
    A(f"v_exp_f32 {v(vT1)}, {v(vT1)}")
    A(f"v_mov_b32 {v(vMR)}, {v(vTM)}")
    A(f"v_mul_f32 {v(vMC)}, {sC}, {v(vTM)}")
    A(f"v_mul_f32 {v(vL)}, {v(vL)}, {v(vT1)}")
    A(f"v_mov_b32 {v(vT2)}, {v(vT1)}")
    A("s_nop 1")
    A(f"v_mov_b32_dpp {v(vT2)}, {v(vT1)} row_ror:8 row_mask:0x3 bank_mask:0xc")
    A(f"v_mov_b32_dpp {v(vT2)}, {v(vT1)} row_ror:8 row_mask:0xc bank_mask:0x3")
    for k in range(8): A(f"v_mul_f32 {v(ACC+k)}, {v(ACC+k)}, {v(vT2)}")
    LBL(f"L_nomax{tag}")
    A(f"v_fma_f32 {v(vPA)}, {v(vSA)}, {sC}, -{v(vMC)}")
    A(f"v_fma_f32 {v(vPB)}, {v(vSB)}, {sC}, -{v(vMC)}")
    A(f"v_exp_f32 {v(vPA)}, {v(vPA)}")
    A(f"v_exp_f32 {v(vPB)}, {v(vPB)}")
    A("s_nop 0")
    A(f"v_cvt_pk_bf16_f32 {v(vT0)}, {v(vPA)}, {v(vPA)}")
    A(f"v_cvt_pk_bf16_f32 {v(vT1)}, {v(vPB)}, {v(vPB)}")
    for d in range(4): A(f"v_and_b32 {v(AOP+d)}, {v(vT0)}, {v(MASK+d)}")
    for d in range(4): A(f"v_and_b32 {v(AOP+4+d)}, {v(vT1)}, {v(MASK+d)}")
    A(f"v_add_f32 {v(vL)}, {v(vL)}, {v(vPA)}")
    A(f"v_add_f32 {v(vL)}, {v(vL)}, {v(vPB)}")
    A("s_waitcnt vmcnt(12)" if not drain else "s_nop 0")
    A(f"v_mfma_f32_16x16x32_bf16 {vr(ACC,4)}, {vr(AOP,4)}, {vr(V,4)}, {vr(ACC,4)}")
    A(f"v_mfma_f32_16x16x32_bf16 {vr(ACC+4,4)}, {vr(AOP,4)}, {vr(V+4,4)}, {vr(ACC+4,4)}")
    A(f"v_mfma_f32_16x16x32_bf16 {vr(ACC,4)}, {vr(AOP+4,4)}, {vr(V+8,4)}, {vr(ACC,4)}")
    A(f"v_mfma_f32_16x16x32_bf16 {vr(ACC+4,4)}, {vr(AOP+4,4)}, {vr(V+12,4)}, {vr(ACC+4,4)}")
    if drain: return
    issue_V(st)
    A(f"s_cmp_eq_u32 {sPEND}, 0")
    A(f"s_cbranch_scc1 L_nopend{tag}")
    C("the piece fetched from the head's global counter becomes NEXT")
    A("s_waitcnt lgkmcnt(0)")
    A(f"s_sub_u32 {sFET}, {sFET}, {sCB}")
    A(f"s_min_u32 {sFET}, {sFET}, 0x4000")
    A(f"s_lshr_b32 s12, {sFET}, {5+LHP}")
    A(f"s_mul_i32 s12, s12, {MD*ROW}")
    A(f"s_and_b32 s13, {sFET}, {NP-1}")
    A(f"s_lshl_b32 s13, s13, {LCW}")
    A("s_add_u32 s12, s12, s13")
    A(f"s_add_u32 s12, s12, {RSr*ROW}")
    A("s_lshl_b32 s13, s12, 19")
    A(f"s_or_b32 s13, s13, {MD<<12}")
    A("s_cmp_ge_u32 s12, 8192")
    A(f"s_cselect_b32 {sFET}, 0xfff80001, s13")
    A(f"v_mov_b32 {v(vT0)}, {sFET}")
    A(f"ds_write_b32 {v(vZ)}, {v(vT0)} offset:{NEXT}")
    A(f"s_mov_b32 {sPEND}, 0")
    LBL(f"L_nopend{tag}")

def slow(tag):
    LBL(f"L_slow{tag}")
    A("s_cmp_eq_u32 s12, 0x1fff")
    A(f"s_cbranch_scc1 L_drain{tag}")
    A("s_cmp_eq_u32 s13, s6")
    A(f"s_cbranch_scc1 L_inst{tag}")
    C("chunk exhausted, another wave installs the next one: watch the word, then draw again")
    A("s_lshr_b32 s7, s14, 12")
    A("s_mov_b32 s13, 4000000")
    LBL(f"L_retry{tag}")
    A("s_sleep 1")
    A(f"ds_read_b32 {v(vT0)}, {v(vZ)} offset:{TKT}")
    A("s_waitcnt lgkmcnt(0)")
    A(f"v_readfirstlane_b32 s12, {v(vT0)}")
    A("s_lshr_b32 s12, s12, 12")
    A("s_cmp_lg_u32 s12, s7")
    A(f"s_cbranch_scc1 L_redraw{tag}")
    A("s_sub_u32 s13, s13, 1")
    A("s_cmp_lg_u32 s13, 0")
    A(f"s_cbranch_scc1 L_retry{tag}")
    A(f"s_branch L_drain{tag}")
    LBL(f"L_redraw{tag}")
    A("s_mov_b64 exec, 1")
    A(f"ds_add_rtn_u32 {v(vTK)}, {v(vZ)}, {v(vONE)} offset:{TKT}")
    A("s_mov_b64 exec, -1")
    A(f"s_branch L_chk{tag}")
    LBL(f"L_inst{tag}")
    A("s_mov_b32 s13, 4000000")
    LBL(f"L_instw{tag}")
    A(f"ds_read_b32 {v(vT0)}, {v(vZ)} offset:{NEXT}")
    A("s_waitcnt lgkmcnt(0)")
    A(f"v_readfirstlane_b32 s12, {v(vT0)}")
    A("s_cmp_lg_u32 s12, -1")
    A(f"s_cbranch_scc1 L_instg{tag}")
    A("s_sleep 1")
    A("s_sub_u32 s13, s13, 1")
    A("s_cmp_lg_u32 s13, 0")
    A(f"s_cbranch_scc1 L_instw{tag}")
    A("s_mov_b32 s12, 0xfff80001")
    LBL(f"L_instg{tag}")
    A("s_cmp_eq_u32 s12, 0xfff80001")
    A(f"s_cbranch_scc0 L_instv{tag}")
    A(f"v_mov_b32 {v(vT0)}, s12")
    A(f"ds_write_b32 {v(vZ)}, {v(vT0)} offset:{TKT}")
    A(f"s_branch L_drain{tag}")
    LBL(f"L_instv{tag}")
    C("valid chunk s12 (packed): install it (this wave takes slot 0), fetch the one after it")
    A(f"v_mov_b32 {v(vT1)}, -1")
    A(f"s_mov_b32 {sFET}, 1")
    A(f"s_atomic_add {sFET}, {pWS}, {sCOFF} glc")
    A(f"s_mov_b32 {sPEND}, 1")
    A(f"ds_write_b32 {v(vZ)}, {v(vT1)} offset:{NEXT}")
    A("s_or_b32 s13, s12, 1")
    A(f"v_mov_b32 {v(vT0)}, s13")
    A(f"ds_write_b32 {v(vZ)}, {v(vT0)} offset:{TKT}")
    A("s_lshr_b32 s12, s12, 19")
    A("s_mov_b32 s13, 0")
    A(f"s_branch L_ok{tag}")

LBL("L_loop")
tile(0, "0")
tile(1, "1")
A("s_branch L_loop")
slow("0")
slow("1")
LBL("L_drain1")
tile(1, "d1", drain=True)
tile(0, "d1b", drain=True)
A("s_branch L_loopend")
LBL("L_drain0")
tile(0, "d0", drain=True)
tile(1, "d0b", drain=True)
LBL("L_loopend")
stamp(2)
if OPT["NOTAIL"] == 1: A("s_endpgm")

C("===== T1: combine the waves of this workgroup, per head =====")
xrow_allreduce("v_add_f32", [vL], [vT0])
C("O -> LDS : OBUF + wave*2048 + ((l>>5)*256 + 8n + 4*((l>>4)&1))*4")
A(f"v_lshrrev_b32 {v(vT1)}, 5, {v(vLANE)}")
A(f"v_lshlrev_b32 {v(vT1)}, 10, {v(vT1)}")
A(f"v_lshl_add_u32 {v(vT1)}, {v(vN)}, 5, {v(vT1)}")
A(f"v_and_b32 {v(vT2)}, 1, {v(vG)}")
A(f"v_lshl_add_u32 {v(vT1)}, {v(vT2)}, 4, {v(vT1)}")
A(f"s_lshl_b32 s12, {sWAVE}, 11")
A(f"v_add_u32 {v(vT1)}, s12, {v(vT1)}")
A(f"ds_write_b128 {v(vT1)}, {vr(ACC,4)} offset:{OBUF}")
A(f"ds_write_b128 {v(vT1)}, {vr(ACC+4,4)} offset:{OBUF+512}")
C("(Mc,l) from lanes 0 and 8: ML + ((sel*2+qh)*WPH + wl)*8")
A(f"v_mul_u32_u24 {v(vT1)}, {WPH}, {v(vLANE)}")
A(f"s_lshr_b32 s12, {sWAVE}, {LHP}")
A(f"s_mul_i32 s13, {sSEL}, {2*WPH}")
A("s_add_u32 s12, s12, s13")
A("s_lshl_b32 s12, s12, 3")
A(f"v_add_u32 {v(vT1)}, s12, {v(vT1)}")
A("s_mov_b64 exec, 0x101")
A(f"ds_write_b64 {v(vT1)}, {vr(vMC,2)} offset:{ML}")
A("s_mov_b64 exec, -1")
C("addresses for the combine (thread t: sel = t>>9, qh = (t>>8)&1, dim = t&255)")
A(f"s_lshr_b32 s7, {sWAVE}, 3")
A(f"s_mul_i32 s12, s7, {NG}")
A(f"s_add_u32 s12, s12, {sPG}")
A(f"s_lshl_b32 s12, s12, {5+LHP}")
A(f"s_add_u32 s12, s12, {sJ}")
A("s_lshl_b32 s12, s12, 13")
A("s_add_u32 s60, s42, s12"); A("s_addc_u32 s61, s43, 0")
A("v_lshrrev_b32 v60, 8, v0")
A(f"v_mul_u32_u24 v60, {WPH*8}, v60")
A("v_and_b32 v63, 511, v0")
A("s_lshl_b32 s13, s7, 11")
A("v_lshlrev_b32 v62, 2, v63")
A("v_add_u32 v62, s13, v62")
A(f"v_mov_b32 v45, {sTAG}"); A(f"v_mov_b32 v41, {sTAG}"); A(f"v_mov_b32 v43, {sTAG}")
A("s_waitcnt vmcnt(0) lgkmcnt(0)")
A("s_barrier")
if HP == 1:
    A(f"s_cmp_ge_u32 {sWAVE}, 8")
    A("s_cbranch_scc1 L_t3_check")
for k in range(WPH//2):
    A(f"ds_read_b128 {vr(64+4*k,4)}, v60 offset:{ML+16*k}")
for k in range(WPH):
    A(f"ds_read_b32 {v(96+k)}, v62 offset:{OBUF+2048*HP*k}")
A("v_lshlrev_b32 v62, 3, v63")
A(f"s_waitcnt lgkmcnt({min(15,WPH)})")
A("v_max3_f32 v40, v64, v66, v68")
for k in range(3, WPH-1, 2): A(f"v_max3_f32 v40, v40, {v(64+2*k)}, {v(66+2*k)}")
A(f"v_max_f32 v40, v40, {v(64+2*(WPH-1))}")
for k in range(WPH): A(f"v_sub_f32 {v(64+2*k)}, {v(64+2*k)}, v40")
for k in range(WPH): A(f"v_exp_f32 {v(64+2*k)}, {v(64+2*k)}")
A("s_waitcnt lgkmcnt(0)")
A("v_mul_f32 v44, v64, v96")
for k in range(1, WPH): A(f"v_fmac_f32 v44, {v(64+2*k)}, {v(96+k)}")
if OPT["W16"]:
    A(f"v_mov_b32 v47, {sTAG}")
    A("s_nop 0")
    A(f"v_mov_b32_dpp v46, v44 quad_perm:[1,1,3,3] {DPPALL}")
    A("s_mov_b32 exec_lo, 0x55555555")
    A("s_mov_b32 exec_hi, 0x55555555")
    A("global_store_dwordx4 v62, v[44:47], s[60:61] sc1")
    A("s_mov_b64 exec, -1")
else:
    A("global_store_dwordx2 v62, v[44:45], s[60:61] sc1")
A("v_mul_f32 v42, v64, v65")
for k in range(1, WPH): A(f"v_fmac_f32 v42, {v(64+2*k)}, {v(65+2*k)}")
A("v_and_b32 v62, 255, v0")
A("v_lshrrev_b32 v60, 4, v63")
A("v_add_u32 v60, 0x1000, v60")
A("v_cmp_eq_u32 vcc, 0, v62")
A("s_and_saveexec_b64 s[62:63], vcc")
A("s_cbranch_execz L_t1_noml")
A("global_store_dwordx4 v60, v[40:43], s[60:61] sc1")
LBL("L_t1_noml")
A("s_mov_b64 exec, s[62:63]")
if OPT["NOTAIL"] == 2: A("s_endpgm")
A(f"s_cmp_lg_u32 {sWAVE}, 0")
A("s_cbranch_scc1 L_t3_check")

NK = 8*HP
C("===== T2 (wave 0): combine the head's partials for 16 o-dims, out-projection =====")
A(f"v_mul_u32_u24 v60, 896, {v(vG)}")
A(f"v_lshl_add_u32 v60, {v(vN)}, 4, v60")
for jj in range(4):
    for cb in range(4):
        A(f"ds_read_b128 {vr(64+16*jj+4*cb,4)}, v60 offset:{WOBUF+jj*3584+cb*256}")
if not OPT["W16"]:
    C("O granules: slot (hT*NP + sq*NK + k), offset (16 sl + d)*8")
    A(f"v_lshlrev_b32 v60, {13+3+LHP}, {v(vG)}")
    A(f"v_lshl_add_u32 v60, {v(vN)}, 3, v60")
    A(f"s_lshl_b32 s13, {sHT}, {13+5+LHP}")
    A(f"s_lshl_b32 s14, {sSL}, 7")
    A("s_add_u32 s14, s13, s14")
    A("v_add_u32 v60, s14, v60")
    A(f"v_and_b32 v62, {NP-1}, {v(vLANE)}")
    A("v_lshlrev_b32 v62, 13, v62")
    A(f"s_lshr_b32 s14, {sSL}, 4")
    A("s_lshl_b32 s14, s14, 4")
    A("s_add_u32 s13, s13, s14")
    A("s_add_u32 s13, s13, 0x1000")
    A("v_add_u32 v62, s13, v62")
    OR_, MLR = 16, 48
    loads = ["s_mov_b32 s13, 0"]
    for k in range(NK):
        loads.append(f"buffer_load_dwordx2 {vr(OR_+2*k,2)}, v60, {srdWS}, s13 offen sc1")
        if k < NK-1: loads.append("s_add_u32 s13, s13, 8192")
    loads.append(f"buffer_load_dwordx4 {vr(MLR,4)}, v62, {srdWS}, 0 offen sc1")
    poll("t2", loads, [OR_+1+2*k for k in range(NK)] + [MLR+1, MLR+3])
    stamp(3)
    sw = (16,) if HP == 1 else (32, 16)
    A(f"v_mov_b32 v52, {v(MLR)}")
    row_allreduce("v_max_f32", [52])
    xrow_allreduce("v_max_f32", [52], [53], which=sw)
    A(f"v_sub_f32 {v(MLR)}, {v(MLR)}, v52")
    A(f"v_exp_f32 {v(MLR)}, {v(MLR)}")
    A("s_nop 0")
    A(f"v_mul_f32 {v(MLR+2)}, {v(MLR+2)}, {v(MLR)}")
    row_allreduce("v_add_f32", [MLR+2])
    xrow_allreduce("v_add_f32", [MLR+2], [53], which=sw)
    A(f"v_rcp_f32 {v(MLR+2)}, {v(MLR+2)}")
    A(f"v_lshlrev_b32 v62, 2, {v(vLANE)}")
    A(f"v_mul_f32 {v(MLR)}, {v(MLR)}, {v(MLR+2)}")
    if HP == 1: A("s_mov_b32 exec_hi, 0")
    A(f"ds_write_b32 v62, {v(MLR)} offset:{WGT}")
    if HP == 1: A("s_mov_b64 exec, -1")
    A(f"v_lshlrev_b32 v62, {5+LHP}, {v(vG)}")
    A("s_waitcnt lgkmcnt(0)")
    WR = [8, 12, 52, 56]
    for q4 in range(NK//4):
        A(f"ds_read_b128 {vr(WR[q4],4)}, v62 offset:{WGT+16*q4}")
    A("s_waitcnt lgkmcnt(0)")
    A(f"v_mul_f32 v60, v8, {v(OR_)}")
    for k in range(1, NK): A(f"v_fmac_f32 v60, {v(WR[k//4]+k%4)}, {v(OR_+2*k)}")
    xrow_allreduce("v_add_f32", [60], [61])
    A("v_cvt_pk_bf16_f32 v60, v60, v60")
    A(f"v_lshlrev_b32 v62, 2, {v(vG)}")
    for jj in range(4):
        A(f"v_add_u32 v61, {16*jj}, v62")
        A(f"ds_bpermute_b32 {v(40+jj)}, v61, v60")
    A("s_waitcnt lgkmcnt(0)")
else:
    NK4 = 4*HP
    C("O granule pairs: lane (d2 = l&7, sg = l>>3): slots hT*NP + sg*NK4 + k, offset (16 sl + 2 d2)*8")
    A(f"v_lshrrev_b32 v61, 3, {v(vLANE)}")
    A(f"v_lshlrev_b32 v60, {13+2+LHP}, v61")
    A(f"v_and_b32 v63, 7, {v(vLANE)}")
    A("v_lshl_add_u32 v60, v63, 4, v60")
    A(f"s_lshl_b32 s13, {sHT}, {13+5+LHP}")
    A(f"s_lshl_b32 s14, {sSL}, 7")
    A("s_add_u32 s14, s13, s14")
    A("v_add_u32 v60, s14, v60")
    A(f"v_and_b32 v62, {NP-1}, {v(vLANE)}")
    A("v_lshlrev_b32 v62, 13, v62")
    A(f"s_lshr_b32 s14, {sSL}, 4")
    A("s_lshl_b32 s14, s14, 4")
    A("s_add_u32 s13, s13, s14")
    A("s_add_u32 s13, s13, 0x1000")
    A("v_add_u32 v62, s13, v62")
    C("selector: replicate low (g even) or high (g odd) half")
    A(f"v_and_b32 v63, 1, {v(vG)}")
    A("v_mul_u32_u24 v63, 0x0202, v63")
    A("v_lshl_or_b32 v63, v63, 16, v63")
    A("v_add_u32 v63, 0x01000100, v63")
    OR_, MLR = 16, 48
    loads = ["s_mov_b32 s13, 0"]
    for k in range(NK4):
        loads.append(f"buffer_load_dwordx4 {vr(OR_+4*k,4)}, v60, {srdWS}, s13 offen sc1")
        if k < NK4-1: loads.append("s_add_u32 s13, s13, 8192")
    loads.append(f"buffer_load_dwordx4 {vr(MLR,4)}, v62, {srdWS}, 0 offen sc1")
    poll("t2", loads, [OR_+1+2*k for k in range(2*NK4)] + [MLR+1, MLR+3])
    stamp(3)
    sw = (16,) if HP == 1 else (32, 16)
    A(f"v_mov_b32 v52, {v(MLR)}")
    row_allreduce("v_max_f32", [52])
    xrow_allreduce("v_max_f32", [52], [53], which=sw)
    A(f"v_sub_f32 {v(MLR)}, {v(MLR)}, v52")
    A(f"v_exp_f32 {v(MLR)}, {v(MLR)}")
    A("s_nop 0")
    A(f"v_mul_f32 {v(MLR+2)}, {v(MLR+2)}, {v(MLR)}")
    row_allreduce("v_add_f32", [MLR+2])
    xrow_allreduce("v_add_f32", [MLR+2], [53], which=sw)
    A(f"v_rcp_f32 {v(MLR+2)}, {v(MLR+2)}")
    A(f"v_lshlrev_b32 v62, 2, {v(vLANE)}")
    A(f"v_mul_f32 {v(MLR)}, {v(MLR)}, {v(MLR+2)}")
    if HP == 1: A("s_mov_b32 exec_hi, 0")
    A(f"ds_write_b32 v62, {v(MLR)} offset:{WGT}")
    if HP == 1: A("s_mov_b64 exec, -1")
    A(f"v_lshlrev_b32 v62, {4+LHP}, v61")
    A("s_waitcnt lgkmcnt(0)")
    for q4 in range(NK4//4):
        A(f"ds_read_b128 {vr(8+4*q4,4)}, v62 offset:{WGT+16*q4}")
    A("s_waitcnt lgkmcnt(0)")
    A(f"v_mul_f32 v52, v8, {v(OR_)}")
    A(f"v_mul_f32 v53, v8, {v(OR_+2)}")
    for k in range(1, NK4):
        A(f"v_fmac_f32 v52, {v(8+k)}, {v(OR_+4*k)}")
        A(f"v_fmac_f32 v53, {v(8+k)}, {v(OR_+4*k+2)}")
    A("s_nop 0")
    A(f"v_add_f32_dpp v52, v52, v52 row_ror:8 {DPPALL}")
    A(f"v_add_f32_dpp v53, v53, v53 row_ror:8 {DPPALL}")
    xrow_allreduce("v_add_f32", [52, 53], [54, 55])
    A("v_cvt_pk_bf16_f32 v60, v52, v53")
    A(f"v_lshrrev_b32 v62, 1, {v(vG)}")
    A("v_lshlrev_b32 v62, 2, v62")
    for jj in range(4):
        A(f"v_add_u32 v61, {8*jj}, v62")
        A(f"ds_bpermute_b32 {v(40+jj)}, v61, v60")
    A("s_waitcnt lgkmcnt(0)")
    for jj in range(4):
        A(f"v_perm_b32 {v(40+jj)}, {v(40+jj)}, {v(40+jj)}, v63")
for jj in range(4):
    for d in range(4):
        A(f"v_and_b32 {v(44+4*jj+d)}, {v(40+jj)}, {v(MASK+d)}")
A("s_nop 1")
for jj in range(4):
    for cb in range(4):
        src = "0" if jj == 0 else vr(8+4*cb, 4)
        A(f"v_mfma_f32_16x16x32_bf16 {vr(8+4*cb,4)}, {vr(44+4*jj,4)}, {vr(64+16*jj+4*cb,4)}, {src}")
C("a-vector store address: AVEC + wg*4096 + (8n+4G)*8 + cb*1024")
A(f"v_lshlrev_b32 v62, 6, {v(vN)}")
A(f"v_lshl_add_u32 v62, {v(vG)}, 5, v62")
A("s_lshl_b32 s13, s2, 12")
A(f"s_add_u32 s13, s13, {AVEC}")
A("v_add_u32 v62, s13, v62")
for t in range(8):
    A(f"v_mov_b32 {v(25+4*t)}, {sTAG}")
    A(f"v_mov_b32 {v(27+4*t)}, {sTAG}")
A("s_nop 3")
for cb in range(4):
    for hfp in range(2):
        t = 2*cb + hfp
        A(f"v_mov_b32 {v(24+4*t)}, {v(8+4*cb+2*hfp)}")
        A(f"v_mov_b32 {v(26+4*t)}, {v(8+4*cb+2*hfp+1)}")
A("s_mov_b32 exec_hi, 0")
for cb in range(4):
    if cb == 3: A("s_mov_b64 exec, 0x00ff00ff")
    for hfp in range(2):
        t = 2*cb + hfp
        A(f"global_store_dwordx4 v62, {vr(24+4*t,4)}, {pWS} offset:{cb*1024+16*hfp} sc1")
A("s_mov_b64 exec, -1")
stamp(4)

LBL("L_t3_check")
if OPT["NOTAIL"]: A("s_endpgm")
A(f"s_cmp_lt_u32 {sIDX}, 28")
A("s_cbranch_scc1 L_end")
A(f"s_sub_u32 s6, {sIDX}, 28")
A("s_lshl_b32 s6, s6, 3")
A(f"s_add_u32 s6, s6, {sX}")
A("s_cmp_ge_u32 s6, 28")
A("s_cbranch_scc1 L_end")
C("===== T3: final reduce for columns 16f..16f+15 =====")
A("v_lshrrev_b32 v60, 3, v0")
A("v_lshlrev_b32 v60, 12, v60")
A("v_and_b32 v61, 7, v0")
A("v_lshl_add_u32 v60, v61, 4, v60")
A("s_lshl_b32 s13, s6, 7")
A("v_add_u32 v60, s13, v60")
A("s_lshl_b32 s13, s6, 5")
A("v_lshlrev_b32 v61, 2, v61")
A("v_add_u32 v61, s13, v61")
A(f"global_load_dword v56, v61, {pB2}")
A(f"s_mov_b32 s64, {AVEC}"); A(f"s_mov_b32 s65, {AVEC+128*VSTR}"); A(f"s_mov_b32 s66, {BVEC}"); A(f"s_mov_b32 s67, {BVEC+128*VSTR}")
A(f"s_cmp_ge_u32 {sWAVE}, 12")
A("s_cbranch_scc1 L_t3_p3")
loads = [f"buffer_load_dwordx4 {vr(16+4*k,4)}, v60, {srdWS}, s{64+k} offen sc1" for k in range(4)]
poll("t3a", loads, [17+2*k for k in range(8)])
A("s_branch L_t3_sum")
LBL("L_t3_p3")
A("v_mov_b32 v28, 0"); A("v_mov_b32 v30, 0")
poll("t3b", loads[:3], [17+2*k for k in range(6)])
LBL("L_t3_sum")
stamp(5)
A("v_add_f32 v40, v16, v20"); A("v_add_f32 v41, v18, v22"); A("v_add_f32 v42, v24, v28"); A("v_add_f32 v43, v26, v30")
for r in range(40, 44): A(f"v_add_f32_dpp {v(r)}, {v(r)}, {v(r)} row_ror:8 {DPPALL}")
xrow_allreduce("v_add_f32", [40, 41, 42, 43], [44, 45, 46, 47])
A(f"v_lshlrev_b32 v62, 4, {v(vLANE)}")
A(f"s_lshl_b32 s13, {sWAVE}, 7")
A("v_add_u32 v62, s13, v62")
A("s_mov_b64 exec, 0xff")
A(f"ds_write_b128 v62, v[40:43] offset:{RED}")
A("s_mov_b64 exec, -1")
A("s_waitcnt lgkmcnt(0)")
A("s_barrier")
A(f"s_cmp_lg_u32 {sWAVE}, 0")
A("s_cbranch_scc1 L_end")
A(f"v_lshlrev_b32 v62, 4, {v(vLANE)}")
A(f"ds_read_b128 v[40:43], v62 offset:{RED}")
A(f"ds_read_b128 v[44:47], v62 offset:{RED+1024}")
A("v_mov_b32 v62, 0")
A(f"ds_read_b32 v57, v62 offset:{GATE}")
A("s_waitcnt lgkmcnt(0)")
for k in range(4): A(f"v_add_f32 {v(40+k)}, {v(40+k)}, {v(44+k)}")
for r in range(40, 44): A(f"v_add_f32_dpp {v(r)}, {v(r)}, {v(r)} row_ror:8 {DPPALL}")
xrow_allreduce("v_add_f32", [40, 41, 42, 43], [44, 45, 46, 47])
C("epilogue with the reference's bf16 roundings")
A("v_cvt_pk_bf16_f32 v40, v40, v41")
A("v_cvt_pk_bf16_f32 v42, v42, v43")
unpack(44, 45, 42); unpack(46, 47, 56)
A("v_add_f32 v44, v44, v46"); A("v_add_f32 v45, v45, v47")
A("v_cvt_pk_bf16_f32 v42, v44, v45")
A("v_sub_f32 v58, 1.0, v57")
rnd(58)
unpack(44, 45, 40)
A("v_mul_f32 v44, v44, v57"); A("v_mul_f32 v45, v45, v57")
A("v_cvt_pk_bf16_f32 v40, v44, v45")
unpack(46, 47, 42)
A("v_mul_f32 v46, v46, v58"); A("v_mul_f32 v47, v47, v58")
A("v_cvt_pk_bf16_f32 v42, v46, v47")
unpack(44, 45, 40); unpack(46, 47, 42)
A("v_add_f32 v44, v44, v46"); A("v_add_f32 v45, v45, v47")
A("v_cvt_pk_bf16_f32 v40, v44, v45")
A("s_mov_b64 exec, 0xff")
A(f"global_store_dword v61, v40, {pOUT}")
A("s_cmp_lg_u32 s6, 0")
A("s_cbranch_scc1 L_noepoch")
A(f"s_add_u32 {sEP}, {sEP}, 1")
A(f"v_mov_b32 v44, {sEP}")
A(f"v_mov_b32 v45, {EPOCH}")
A("s_mov_b64 exec, 1")
A(f"global_store_dword v45, v44, {pWS} sc1")
LBL("L_noepoch")
A("s_mov_b64 exec, -1")
stamp(6)
LBL("L_end")
A("s_endpgm")

hdr = open("cdna_kernels/%s.s.ref" % NAME).read().split("; Override launch geometry")[0]
out = hdr
out += "; generated by gen/gen6.py (hand-written generator)\n"
out += f"; @launch grid=(256,1,1) block=(1024,1,1) lds={LDS_BYTES}\n"
out += '.amdgcn_target "amdgcn-amd-amdhsa--gfx950"\n.text\n'
out += f".globl {NAME}_kernel\n.p2align 8\n.type {NAME}_kernel,@function\n"
out += "\n".join(L) + "\n"
out += f""".section .rodata,"a"
.p2align 6
.amdhsa_kernel {NAME}_kernel
  .amdhsa_next_free_vgpr 128
  .amdhsa_next_free_sgpr 96
  .amdhsa_accum_offset 128
  .amdhsa_group_segment_fixed_size 0
  .amdhsa_kernarg_size 112
  .amdhsa_user_sgpr_count 2
  .amdhsa_user_sgpr_kernarg_segment_ptr 1
  .amdhsa_system_sgpr_workgroup_id_x 1
.end_amdhsa_kernel
"""
open(sys.argv[1], "w").write(out)
print("LDS", LDS_BYTES, "instrs", sum(1 for l in L if l.startswith("    ") and not l.strip().startswith(";")))
```

```python
import struct, sys, math

NAME = "gated_mix__gqa_block_cached__dense_activation_gelu__decode"
def f32(x): return "0x%08x" % struct.unpack("<I", struct.pack("<f", x))[0]

OPT = dict(POL="nt", VPOL="nt", SLEEP=2, STAMP=0, SPOL="nt", PRIO=1, NACT=2, RSR=48, HP=1, NOTAIL=0, PT=4, W16=1, CWO=4, ROT=2048)
for a in sys.argv[2:]:
    k, v_ = a.split("=")
    OPT[k] = v_ if not v_.lstrip("-").isdigit() else int(v_)
SPOL = OPT["SPOL"].replace("_", " ") if OPT["SPOL"] != "none" else ""
HP = OPT["HP"]; LHP = HP.bit_length()-1; NG = 8//HP; NP = 32*HP; WPH = 16//HP
NACT = OPT["NACT"]; CW = OPT["CWO"] or NACT//HP; LCW = CW.bit_length()-1; ROW = NP*CW; LROW = ROW.bit_length()-1
NR = 8192//ROW; R0 = 2*WPH//CW; RSr = OPT["RSR"]*NR//64
MD = max(1, OPT["PT"]//CW); ML_ = max(1, 8//CW)
assert CW >= 1 and (NR-RSr) % MD == 0 and RSr-R0-ML_ > 0 and RSr-R0-ML_ < 128

L = []
def A(s): L.append("    " + s)
def LBL(s): L.append(s + ":")
def C(s): L.append("    ; " + s)

QBF, TKB, GATE, ML, WGT, RED, WOBUF, OBUF = 0, 2048, 2096, 2176, 2432, 2688, 4736, 19456
TKT, NEXT, CBASE, QFLAG = TKB, TKB+4, TKB+8, TKB+12
LDS_BYTES = OBUF + 32768
PART = 0
AVEC, BVEC, VSTR = 0x400000, 0x500000, 4096
QX, CNTB, EPOCH = 0x600000, 0x610000, 0x1F00
sWAVE, sPG, sJ, sC, sTAG, sJJ, sEP = "s3", "s4", "s5", "s9", "s10", "s11", "s15"
sBASE, sHW, sX, sIDX, sPEND, sFET, sCOFF, sCB, sHT, sSL, sSEL, sCB2 = "s78", "s79", "s80", "s81", "s82", "s83", "s84", "s85", "s86", "s87", "s88", "s89"
sROT = "s90"
pX, pK, pV, pWQ, pWO, pW1, pB1, pW2, pB2, pGW, pOUT, pDBG, pWS = (
    "s[16:17]", "s[18:19]", "s[20:21]", "s[22:23]", "s[24:25]", "s[28:29]", "s[30:31]",
    "s[32:33]", "s[34:35]", "s[36:37]", "s[38:39]", "s[40:41]", "s[42:43]")
srdK, srdV, srdT, srdWS = "s[44:47]", "s[48:51]", "s[52:55]", "s[56:59]"
vG, vLANE, vN = 1, 2, 3
MASK = 4
ACC = 8
Q = 16
vT2, vMR = 32, 33
vMC, vL = 34, 35
D = 36
vTA, vTB, vPK, vSA, vSB, vTM, vPA, vPB = 40, 41, 42, 43, 44, 45, 46, 47
AOP = 48
vT0, vT1, vKV, vLP = 56, 57, 58, 59
vTK, vONE, vZ = 60, 61, 62
STG = 64
def v(i): return "v%d" % i
def vr(i, n): return "v[%d:%d]" % (i, i + n - 1)
KOFF = [0, 256, 2048, 2304]
def issue_K(st):
    for k in range(4):
        A(f"buffer_load_dwordx4 {vr(STG+32*st+4*k,4)}, {v(vKV)}, {srdK}, 0 offen offset:{KOFF[k]} {OPT['POL'].replace('_',' ')}")
def issue_V(st):
    for k in range(4):
        A(f"buffer_load_dwordx4 {vr(STG+32*st+16+4*k,4)}, {v(vKV)}, {srdV}, 0 offen offset:{KOFF[k]} {OPT['VPOL'].replace('_',' ')}")
DPPALL = "row_mask:0xf bank_mask:0xf"
def row_allreduce(op, regs, pats=("quad_perm:[1,0,3,2]", "quad_perm:[2,3,0,1]", "row_half_mirror", "row_mirror")):
    for pat in pats:
        if len(regs) < 3: A("s_nop 1")
        for r in regs:
            A(f"{op}_dpp {v(r)}, {v(r)}, {v(r)} {pat} {DPPALL}")
def xrow_allreduce(op, regs, tmps, which=(32, 16)):
    for w in which:
        for r, t in zip(regs, tmps): A(f"v_mov_b32 {v(t)}, {v(r)}")
        A("s_nop 1")
        for r, t in zip(regs, tmps): A(f"v_permlane{w}_swap_b32 {v(r)}, {v(t)}")
        for r, t in zip(regs, tmps): A(f"{op} {v(r)}, {v(r)}, {v(t)}")
def poll(name, loads, tags):
    A("s_mov_b32 s12, 200000")
    LBL(f"L_poll_{name}")
    for l in loads: A(l)
    A("s_waitcnt vmcnt(0)")
    for t in tags: A(f"v_xor_b32 {v(t)}, {sTAG}, {v(t)}")
    regs = list(tags)
    while len(regs) > 1:
        nxt = []
        while len(regs) >= 3:
            A(f"v_or3_b32 {v(regs[0])}, {v(regs[0])}, {v(regs[1])}, {v(regs[2])}"); nxt.append(regs[0]); regs = regs[3:]
        if len(regs) == 2 and not nxt:
            A(f"v_or_b32 {v(regs[0])}, {v(regs[0])}, {v(regs[1])}"); nxt.append(regs[0]); regs = []
        regs = nxt + regs
    A(f"v_cmp_ne_u32 vcc, 0, {v(tags[0])}")
    A(f"s_cbranch_vccz L_done_{name}")
    A("s_mov_b64 exec, vcc")
    if OPT["SLEEP"]: A(f"s_sleep {OPT['SLEEP']}")
    A("s_sub_u32 s12, s12, 1")
    A("s_cmp_lg_u32 s12, 0")
    A(f"s_cbranch_scc1 L_poll_{name}")
    LBL(f"L_done_{name}")
    A("s_mov_b64 exec, -1")
def stamp(idx):
    if not OPT["STAMP"]: return
    A("s_memrealtime s[70:71]")
    A("s_waitcnt lgkmcnt(0)")
    A("v_mov_b32 v36, s70"); A("v_mov_b32 v37, s71")
    A("s_lshl_b32 s72, s2, 8")
    A(f"s_lshl_b32 s73, {sWAVE}, 4")
    A(f"s_add_u32 s72, s72, {0x800000 + idx*0x100000}")
    A("s_add_u32 s72, s72, s73")
    A("v_mov_b32 v38, s72")
    A("s_mov_b64 s[74:75], exec")
    A("s_mov_b64 exec, 1")
    A(f"global_store_dwordx2 v38, v[36:37], {pWS}")
    if idx == 0:
        A("s_getreg_b32 s70, hwreg(HW_REG_XCC_ID)")
        A("v_mov_b32 v36, s70")
        A(f"global_store_dword v38, v36, {pWS} offset:8")
    A("s_mov_b64 exec, s[74:75]")
def unpack(lo, hi, src):
    A(f"v_lshlrev_b32 {v(lo)}, 16, {v(src)}")
    A(f"v_and_b32 {v(hi)}, 0xffff0000, {v(src)}")
def rnd(r):
    A(f"v_cvt_pk_bf16_f32 {v(r)}, {v(r)}, {v(r)}")
    A(f"v_lshlrev_b32 {v(r)}, 16, {v(r)}")
def srd(base4, lo, hi, size):
    A(f"s_mov_b32 s{base4}, {lo}"); A(f"s_mov_b32 s{base4+1}, {hi}"); A(f"s_mov_b32 s{base4+2}, {size}"); A(f"s_mov_b32 s{base4+3}, 0x20000")
def tagcalc():
    A("s_waitcnt lgkmcnt(0)")
    A(f"s_mul_i32 {sTAG}, {sEP}, 0x9E3779B1")
    A(f"s_add_u32 {sTAG}, {sTAG}, 0x7F4A7C15")

LBL(NAME + "_kernel")
A("s_cmp_ge_u32 s2, 256")
A("s_cbranch_scc1 L_end")
A("s_load_dwordx16 s[16:31], s[0:1], 0")
A("s_load_dwordx8 s[32:39], s[0:1], 64")
A("s_load_dwordx4 s[40:43], s[0:1], 96")
A(f"v_lshrrev_b32 v1, 6, v0")
A(f"v_and_b32 {v(vLANE)}, 63, v0")
A(f"v_readfirstlane_b32 {sWAVE}, v1")
C("x = wg&7, idx = wg>>3 ; group pg serves heads pg + k*NG ; j = index inside the group")
A(f"s_and_b32 {sX}, s2, 7")
A(f"s_lshr_b32 {sIDX}, s2, 3")
A(f"s_lshr_b32 {sPG}, {sIDX}, {2+LHP}")
A(f"s_lshl_b32 {sJ}, {sX}, {2+LHP}")
A(f"s_and_b32 s6, {sIDX}, {4*HP-1}")
A(f"s_or_b32 {sJ}, {sJ}, s6")
A(f"s_and_b32 {sSEL}, {sWAVE}, {HP-1}")
A(f"s_mul_i32 {sHW}, {sSEL}, {NG}")
A(f"s_add_u32 {sHW}, {sHW}, {sPG}")
A(f"s_lshr_b32 s6, {sJ}, 5")
A(f"s_mul_i32 {sHT}, s6, {NG}")
A(f"s_add_u32 {sHT}, {sHT}, {sPG}")
A(f"s_and_b32 {sSL}, {sJ}, 31")
A(f"s_lshl_b32 {sCOFF}, {sHW}, 12")
A(f"s_add_u32 {sCOFF}, {sCOFF}, {CNTB}")
A(f"v_and_b32 {v(vN)}, 15, {v(vLANE)}")
A(f"v_lshrrev_b32 {v(vG)}, 4, {v(vLANE)}")
A(f"v_lshlrev_b32 {v(vLP)}, 9, {v(vG)}")
A(f"v_lshl_add_u32 {v(vLP)}, {v(vN)}, 4, {v(vLP)}")
C("column layout: local tile u -> tile (u/CW)*ROW + CW*j + u%CW ; first u = wave/HP")
A(f"s_lshr_b32 s7, {sWAVE}, {LHP}")
A(f"s_lshr_b32 s6, s7, {LCW}")
A(f"s_lshl_b32 s6, s6, {LROW}")
A(f"s_and_b32 s7, s7, {CW-1}")
A("s_add_u32 s6, s6, s7")
A(f"s_lshl_b32 {sBASE}, {sJ}, {LCW}")
A(f"s_add_u32 s6, s6, {sBASE}")
if OPT["ROT"]:
    C("each head walks its keys from a different starting tile")
    A(f"s_mul_i32 {sROT}, {sHW}, {OPT['ROT']}")
    A(f"s_add_u32 s6, s6, {sROT}")
    A("s_add_u32 s7, s6, 512")
    A("s_and_b32 s6, s6, 8191")
    A("s_and_b32 s7, s7, 8191")
    A("s_lshl_b32 s91, s7, 12")
A("s_lshl_b32 s6, s6, 12")
A(f"v_add_u32 {v(vKV)}, s6, {v(vLP)}")
A("s_waitcnt lgkmcnt(0)")
A(f"s_load_dword {sEP}, {pWS}, {EPOCH}")
A(f"s_lshl_b32 s6, {sHW}, 25")
A("s_add_u32 s44, s18, s6"); A("s_addc_u32 s45, s19, 0"); A("s_mov_b32 s46, 0x2000000"); A("s_mov_b32 s47, 0x20000")
A("s_add_u32 s48, s20, s6"); A("s_addc_u32 s49, s21, 0"); A("s_mov_b32 s50, 0x2000000"); A("s_mov_b32 s51, 0x20000")
srd(56, "s42", "s43", "0x40000000")
stamp(0)
A(f"s_cmp_ge_u32 {sWAVE}, 3")
A("s_cbranch_scc1 L_kv0")
if OPT["PRIO"]: A("s_setprio 3")
A(f"s_cmp_eq_u32 {sWAVE}, 1")
A("s_cbranch_scc1 L_w1")
A(f"s_cmp_eq_u32 {sWAVE}, 2")
A("s_cbranch_scc1 L_w2")

C("===== wave 0: 16-column slice of q = x @ wq ; publish ; gather the group's q =====")
C("LDS may hold an earlier launch's flags: clear them before the start barrier")
A("v_mov_b32 v62, 0")
for k in range(HP): A(f"ds_write_b32 v62, v62 offset:{QFLAG+16*k}")
srd(52, "s22", "s23", 448*8192)
A(f"v_lshrrev_b32 v60, 1, {v(vLANE)}")
A("v_lshlrev_b32 v61, 13, v60")
A(f"v_and_b32 v62, 1, {v(vLANE)}")
A("v_lshl_add_u32 v61, v62, 4, v61")
C("work counters of the group's heads: their value now is this launch's zero")
A(f"s_load_dword {sCB}, {pWS}, {sCOFF}")
if HP == 2:
    A(f"s_add_u32 s13, {sCOFF}, {NG*4096}")
    A(f"s_load_dword {sCB2}, {pWS}, s13")
A(f"s_lshl_b32 s12, {sHT}, 10")
A(f"s_lshl_b32 s13, {sSL}, 5")
A("s_add_u32 s12, s12, s13")
for k in range(14):
    A(f"buffer_load_dwordx4 {vr(64+4*k,4)}, v61, {srdT}, s12 offen {SPOL}")
    if k < 13: A(f"s_add_u32 s12, s12, {32*8192}")
A("v_lshlrev_b32 v60, 1, v60")
for k in range(14):
    A(f"global_load_ushort {v(16+k)}, v60, {pX} offset:{64*k}")
A("s_waitcnt lgkmcnt(0)")
A("s_barrier")
A("v_mov_b32 v62, 0")
A(f"s_add_u32 s13, {sBASE}, {R0*ROW}")
A("s_lshl_b32 s13, s13, 19")
A(f"s_or_b32 s13, s13, {(RSr-R0-ML_)<<12}")
A("v_mov_b32 v60, s13")
A(f"s_add_u32 s13, {sBASE}, {(RSr-ML_)*ROW}")
A("s_lshl_b32 s13, s13, 19")
A(f"s_or_b32 s13, s13, {ML_<<12}")
A("v_mov_b32 v61, s13")
for k in range(HP): A(f"ds_write_b64 v62, v[60:61] offset:{TKT+16*k}")
tagcalc()
A(f"v_mov_b32 v61, {sCB}")
A(f"ds_write_b32 v62, v61 offset:{CBASE}")
if HP == 2:
    A(f"v_mov_b32 v60, {sCB2}")
    A(f"ds_write_b32 v62, v60 offset:{CBASE+16}")
A("s_mov_b32 s13, 0x05040100")
A("s_mov_b32 s14, 0x07060302")
A("s_waitcnt vmcnt(0)")
for kp in range(7):
    A(f"v_lshl_or_b32 {v(16+2*kp)}, {v(17+2*kp)}, 16, {v(16+2*kp)}")
for kp in range(7):
    a, b = 64+8*kp, 68+8*kp
    for d in range(4):
        A(f"v_perm_b32 {v(48+2*d)}, {v(b+d)}, {v(a+d)}, s13")
        A(f"v_perm_b32 {v(49+2*d)}, {v(b+d)}, {v(a+d)}, s14")
    for c in range(8):
        A(f"v_dot2_f32_bf16 {v(40+c)}, {v(48+c)}, {v(16+2*kp)}, {'0' if kp==0 else v(40+c)}")
A("s_nop 2")
row_allreduce("v_add_f32", list(range(40, 48)), pats=("row_ror:8", "row_ror:4", "row_ror:2"))
xrow_allreduce("v_add_f32", list(range(40, 48)), list(range(48, 56)))
for k in range(4):
    A(f"v_cvt_pk_bf16_f32 {v(48+2*k)}, {v(40+2*k)}, {v(41+2*k)}")
    A(f"v_mov_b32 {v(49+2*k)}, {sTAG}")
A(f"v_lshlrev_b32 v60, 5, {v(vLANE)}")
A(f"s_lshl_b32 s13, {sSL}, 6")
A(f"s_lshl_b32 s14, {sHT}, 11")
A("s_add_u32 s13, s13, s14")
A(f"s_add_u32 s13, s13, {QX}")
A("v_add_u32 v61, s13, v60")
A(f"s_lshl_b32 s12, {sPG}, 11")
A(f"s_add_u32 s12, s12, {QX}")
A("v_add_u32 v60, s12, v60")
A("s_mov_b64 exec, 3")
A(f"global_store_dwordx4 v61, v[48:51], {pWS} sc1")
A(f"global_store_dwordx4 v61, v[52:55], {pWS} offset:16 sc1")
A("s_mov_b64 exec, -1")
stamp(11)
A(f"s_mov_b32 s13, {NG*2048}")
loads, tags = [], []
for k in range(HP):
    so = "0" if k == 0 else "s13"
    loads += [f"buffer_load_dwordx4 {vr(16+8*k,4)}, v60, {srdWS}, {so} offen sc1", f"buffer_load_dwordx4 {vr(20+8*k,4)}, v60, {srdWS}, {so} offen offset:16 sc1"]
    tags += [17+8*k, 19+8*k, 21+8*k, 23+8*k]
poll("q", loads, tags)
stamp(12)
A(f"v_lshlrev_b32 v62, 4, {v(vLANE)}")
for k in range(HP):
    b = 16+8*k
    A(f"v_mov_b32 {v(b+1)}, {v(b+2)}"); A(f"v_mov_b32 {v(b+2)}, {v(b+4)}"); A(f"v_mov_b32 {v(b+3)}, {v(b+6)}")
    A(f"ds_write_b128 v62, {vr(b,4)} offset:{QBF+1024*k}")
A("v_mov_b32 v62, 0")
A("v_mov_b32 v61, 1")
A("s_waitcnt lgkmcnt(0)")
for k in range(HP): A(f"ds_write_b32 v62, v61 offset:{QFLAG+16*k}")
A("s_branch L_kv")

LBL("L_w1")
A(f"s_cmp_ge_u32 {sIDX}, 28")
A("s_cbranch_scc1 L_gate")
C("===== wave 1: MLP slice f = 8jj..8jj+7 =====")
A(f"s_mul_i32 {sJJ}, {sX}, 28")
A(f"s_add_u32 {sJJ}, {sJJ}, {sIDX}")
srd(52, "s28", "s29", 448*3584)
A(f"s_lshl_b32 s13, {sJJ}, 4")
A(f"s_load_dwordx4 s[64:67], {pB1}, s13")
A(f"v_mul_u32_u24 v61, 3584, {v(vLANE)}")
for k in range(7):
    A(f"buffer_load_dwordx4 {vr(64+4*k,4)}, v61, {srdT}, s13 offen {SPOL}")
    if k < 6: A(f"s_add_u32 s13, s13, {64*3584}")
A(f"v_lshlrev_b32 v60, 1, {v(vLANE)}")
for k in range(7):
    A(f"global_load_ushort {v(16+k)}, v60, {pX} offset:{128*k}")
A(f"s_mul_i32 s12, {sJJ}, 7168")
A("s_add_u32 s12, s12, 3584")
A(f"v_lshlrev_b32 v62, 4, {v(vLANE)}")
A("v_add_u32 v62, s12, v62")
A("s_mov_b32 exec_hi, 0x00ffffff")
for rr in range(8):
    A(f"global_load_dwordx4 {vr(92+4*rr,4)}, v62, {pW2} offset:{rr*896-3584} {SPOL}")
A("s_mov_b64 exec, -1")
A("s_barrier")
tagcalc()
A("s_waitcnt vmcnt(8)")
for k in range(7):
    A(f"v_lshlrev_b32 {v(16+k)}, 16, {v(16+k)}")
    for d in range(4): unpack(48+2*d, 49+2*d, 64+4*k+d)
    for c in range(8):
        if k == 0: A(f"v_mul_f32 {v(40+c)}, {v(48+c)}, {v(16+k)}")
        else: A(f"v_fmac_f32 {v(40+c)}, {v(48+c)}, {v(16+k)}")
row_allreduce("v_add_f32", list(range(40, 48)))
xrow_allreduce("v_add_f32", list(range(40, 48)), list(range(48, 56)))
k2 = -2.0*math.sqrt(2.0/math.pi)*math.log2(math.e)
A(f"v_mov_b32 v56, {f32(k2)}")
A(f"s_mov_b32 s12, {f32(k2*0.044715)}")
for c in range(8):
    sreg = 64 + c//2
    if c % 2 == 0: A(f"s_lshl_b32 s13, s{sreg}, 16")
    else: A(f"s_and_b32 s13, s{sreg}, 0xffff0000")
    rnd(40+c)
    A(f"v_add_f32 {v(40+c)}, s13, {v(40+c)}")
    rnd(40+c)
for c in range(8): A(f"v_mul_f32 {v(48+c)}, {v(40+c)}, {v(40+c)}")
for c in range(8): A(f"v_fma_f32 {v(48+c)}, {v(48+c)}, s12, v56")
for c in range(8): A(f"v_mul_f32 {v(48+c)}, {v(48+c)}, {v(40+c)}")
for c in range(8): A(f"v_exp_f32 {v(48+c)}, {v(48+c)}")
for c in range(8): A(f"v_add_f32 {v(48+c)}, 1.0, {v(48+c)}")
for c in range(8): A(f"v_rcp_f32 {v(48+c)}, {v(48+c)}")
for c in range(8): A(f"v_mul_f32 {v(40+c)}, {v(40+c)}, {v(48+c)}")
for c in range(8): rnd(40+c)
A("s_waitcnt vmcnt(0)")
for rr in range(8):
    for d in range(4): unpack(48+2*d, 49+2*d, 92+4*rr+d)
    for c in range(8):
        if rr == 0: A(f"v_mul_f32 {v(64+2*c)}, {v(48+c)}, {v(40+rr)}")
        else: A(f"v_fmac_f32 {v(64+2*c)}, {v(48+c)}, {v(40+rr)}")
for c in range(8): A(f"v_mov_b32 {v(65+2*c)}, {sTAG}")
A(f"s_lshl_b32 s12, {sJJ}, 12")
A(f"s_add_u32 s12, s12, {BVEC}")
A(f"v_lshlrev_b32 v62, 6, {v(vLANE)}")
A("v_add_u32 v62, s12, v62")
A("s_mov_b32 exec_hi, 0x00ffffff")
for t in range(4):
    A(f"global_store_dwordx4 v62, {vr(64+4*t,4)}, {pWS} offset:{16*t} sc1")
A("s_mov_b64 exec, -1")
A("s_waitcnt vmcnt(0)")
A("s_branch L_kv")
LBL("L_gate")
C("gate: sigmoid(bf16(sum(bf16(x*gw))))")
for k in range(8): A(f"v_mov_b32 {v(16+k)}, 0")
A(f"v_lshlrev_b32 v62, 4, {v(vLANE)}")
A("s_mov_b32 exec_hi, 0x00ffffff")
A(f"global_load_dwordx4 v[16:19], v62, {pX}")
A(f"global_load_dwordx4 v[20:23], v62, {pGW}")
A("s_mov_b64 exec, -1")
A("s_barrier")
A("s_waitcnt vmcnt(0)")
for k in range(4):
    unpack(40, 41, 16+k); unpack(42, 43, 20+k)
    A("v_mul_f32 v40, v40, v42")
    A("v_mul_f32 v41, v41, v43")
    A("v_cvt_pk_bf16_f32 v40, v40, v41")
    unpack(42, 43, 40)
    if k == 0: A("v_add_f32 v44, v42, v43")
    else:
        A("v_add_f32 v44, v44, v42"); A("v_add_f32 v44, v44, v43")
row_allreduce("v_add_f32", [44])
xrow_allreduce("v_add_f32", [44], [45])
rnd(44)
A(f"v_mul_f32 v44, {f32(-math.log2(math.e))}, v44")
A("v_exp_f32 v44, v44")
A("s_nop 0")
A("v_add_f32 v44, 1.0, v44")
A("v_rcp_f32 v44, v44")
A("s_nop 0")
rnd(44)
A("v_mov_b32 v62, 0")
A("s_mov_b64 exec, 1")
A(f"ds_write_b32 v62, v44 offset:{GATE}")
A("s_mov_b64 exec, -1")
A("s_branch L_kv")

LBL("L_w2")
C("===== wave 2: 16 rows of wo (14336 B contiguous) straight into LDS =====")
srd(52, "s24", "s25", 4096*896)
A(f"s_lshl_b32 s12, {sHT}, 5")
A(f"s_add_u32 s12, s12, {sSL}")
A("s_mul_i32 s12, s12, 14336")
A(f"v_lshlrev_b32 v62, 4, {v(vLANE)}")
for k in range(14):
    if k % 4 == 0:
        A(f"s_mov_b32 m0, {WOBUF + 1024*k}")
        if k: A("s_add_u32 s12, s12, 4096")
        else: A("s_nop 0")
    A(f"buffer_load_dwordx4 v62, {srdT}, s12 offen offset:{1024*(k%4)} {SPOL} lds")

LBL("L_kv0")
A("s_barrier")
LBL("L_kv")
if OPT["PRIO"]: A("s_setprio 2")
issue_K(0); issue_V(0)
if OPT["ROT"]: A(f"v_add_u32 {v(vKV)}, s91, {v(vLP)}")
else: A(f"v_add_u32 {v(vKV)}, 0x200000, {v(vKV)}")
issue_K(1); issue_V(1)
if OPT["PRIO"]: A("s_setprio 0")
stamp(7)
C("diag masks")
A(f"v_and_b32 {v(vT0)}, 1, {v(vLANE)}")
A(f"v_lshlrev_b32 {v(vT0)}, 4, {v(vT0)}")
A(f"v_mov_b32 {v(vT1)}, 0xffff")
A(f"v_lshlrev_b32 {v(vT1)}, {v(vT0)}, {v(vT1)}")
A(f"v_bfe_u32 {v(vT0)}, {v(vLANE)}, 1, 2")
for k in range(4):
    A(f"v_cmp_eq_u32 vcc, {k}, {v(vT0)}")
    A("s_nop 1")
    A(f"v_cndmask_b32 {v(MASK+k)}, 0, {v(vT1)}, vcc")
A(f"s_mov_b32 {sC}, {f32(0.0625*math.log2(math.e))}")
for k in range(8): A(f"v_mov_b32 {v(ACC+k)}, 0")
A(f"v_mov_b32 {v(vMR)}, 0xff800000")
A(f"v_mov_b32 {v(vMC)}, 0xff800000")
A(f"v_mov_b32 {v(vL)}, 0")
A(f"s_lshl_b32 s12, {sSEL}, 4")
A(f"v_mov_b32 {v(vZ)}, s12")
A(f"v_mov_b32 {v(vONE)}, 1")
A(f"s_mov_b32 {sPEND}, 0")
tagcalc()
C("wait for q (LDS flag, cleared before the start barrier)")
A("s_mov_b32 s12, 4000000")
LBL("L_qwait")
A(f"ds_read_b32 {v(vT0)}, {v(vZ)} offset:{QFLAG}")
A("s_waitcnt lgkmcnt(0)")
A(f"v_readfirstlane_b32 s13, {v(vT0)}")
A("s_cmp_eq_u32 s13, 1")
A("s_cbranch_scc1 L_qready")
A("s_sleep 1")
A("s_sub_u32 s12, s12, 1")
A("s_cmp_lg_u32 s12, 0")
A("s_cbranch_scc1 L_qwait")
LBL("L_qready")
A(f"ds_read_b32 {v(vT0)}, {v(vZ)} offset:{CBASE}")
A(f"v_lshlrev_b32 {v(vT1)}, 4, {v(vN)}")
A(f"v_lshl_add_u32 {v(vT1)}, {v(vZ)}, 6, {v(vT1)}")
for h in range(2):
    for hf in range(2):
        A(f"ds_read_b128 {vr(Q+8*h+4*hf,4)}, {v(vT1)} offset:{QBF+512*h+256*hf}")
A("s_waitcnt lgkmcnt(0)")
A(f"v_readfirstlane_b32 {sCB}, {v(vT0)}")
stamp(1)

def tile(st, tag, drain=False):
    K = STG + 32*st
    V = K + 16
    if not drain:
        if NACT < 16:
            A(f"s_cmp_ge_u32 {sWAVE}, {NACT}")
            A(f"s_cbranch_scc1 L_drain{tag}")
        A("s_mov_b64 exec, 1")
        A(f"ds_add_rtn_u32 {v(vTK)}, {v(vZ)}, {v(vONE)} offset:{TKT}")
        A("s_mov_b64 exec, -1")
        LBL(f"L_chk{tag}")
        A("s_waitcnt lgkmcnt(0)")
        A(f"v_readfirstlane_b32 s14, {v(vTK)}")
        A("s_and_b32 s13, s14, 0xfff")
        A("s_bfe_u32 s6, s14, 0x7000c")
        A("s_lshr_b32 s12, s14, 19")
        A(f"s_lshl_b32 s6, s6, {LCW}")
        A("s_cmp_ge_u32 s13, s6")
        A(f"s_cbranch_scc1 L_slow{tag}")
        LBL(f"L_ok{tag}")
        A(f"s_lshr_b32 s6, s13, {LCW}")
        A(f"s_lshl_b32 s6, s6, {LROW}")
        A(f"s_and_b32 s13, s13, {CW-1}")
        A("s_add_u32 s12, s12, s13")
        A("s_add_u32 s12, s12, s6")
        if OPT["ROT"]:
            A(f"s_add_u32 s12, s12, {sROT}")
            A("s_and_b32 s12, s12, 8191")
        A("s_lshl_b32 s12, s12, 12")
        A(f"v_add_u32 {v(vKV)}, s12, {v(vLP)}")
    A("s_waitcnt vmcnt(%d)" % (0 if drain else 12))
    for hf in range(2):
        for k in range(4):
            for grp in range(2):
                for h in range(2):
                    d = D + 2*grp + h
                    src2 = "0" if (hf == 0 and k == 0) else v(d)
                    A(f"v_dot2_f32_bf16 {v(d)}, {v(K+8*grp+4*hf+k)}, {v(Q+8*h+4*hf+k)}, {src2}")
    if not drain: issue_K(st)
    else: A("s_nop 2")
    A(f"v_add_f32_dpp {v(vTA)}, {v(D+0)}, {v(D+0)} row_ror:8 row_mask:0xf bank_mask:0x3")
    A(f"v_add_f32_dpp {v(vTB)}, {v(D+2)}, {v(D+2)} row_ror:8 row_mask:0xf bank_mask:0x3")
    A(f"v_add_f32_dpp {v(vTA)}, {v(D+1)}, {v(D+1)} row_ror:8 row_mask:0xf bank_mask:0xc")
    A(f"v_add_f32_dpp {v(vTB)}, {v(D+3)}, {v(D+3)} row_ror:8 row_mask:0xf bank_mask:0xc")
    for pat in ["row_half_mirror", "quad_perm:[1,0,3,2]", "quad_perm:[2,3,0,1]"]:
        A("s_nop 0")
        A(f"v_add_f32_dpp {v(vTA)}, {v(vTA)}, {v(vTA)} {pat} {DPPALL}")
        A(f"v_add_f32_dpp {v(vTB)}, {v(vTB)}, {v(vTB)} {pat} {DPPALL}")
    A(f"v_cvt_pk_bf16_f32 {v(vPK)}, {v(vTA)}, {v(vTB)}")
    A(f"v_lshlrev_b32 {v(vSA)}, 16, {v(vPK)}")
    A(f"v_and_b32 {v(vSB)}, 0xffff0000, {v(vPK)}")
    A(f"v_max_f32 {v(vTM)}, {v(vSA)}, {v(vSB)}")
    A(f"v_cmp_gt_f32 vcc, {v(vTM)}, {v(vMR)}")
    A(f"s_cbranch_vccz L_nomax{tag}")
    C("new running max: rescale")
    A(f"v_max_f32 {v(vTM)}, {v(vTM)}, {v(vMR)}")
    xrow_allreduce("v_max_f32", [vTM], [vT0])
    A(f"v_sub_f32 {v(vT1)}, {v(vMR)}, {v(vTM)}")
    A(f"v_mul_f32 {v(vT1)}, {sC}, {v(vT1)}")
    A(f"v_exp_f32 {v(vT1)}, {v(vT1)}")
    A(f"v_mov_b32 {v(vMR)}, {v(vTM)}")
    A(f"v_mul_f32 {v(vMC)}, {sC}, {v(vTM)}")
    A(f"v_mul_f32 {v(vL)}, {v(vL)}, {v(vT1)}")
    A(f"v_mov_b32 {v(vT2)}, {v(vT1)}")
    A("s_nop 1")
    A(f"v_mov_b32_dpp {v(vT2)}, {v(vT1)} row_ror:8 row_mask:0x3 bank_mask:0xc")
    A(f"v_mov_b32_dpp {v(vT2)}, {v(vT1)} row_ror:8 row_mask:0xc bank_mask:0x3")
    for k in range(8): A(f"v_mul_f32 {v(ACC+k)}, {v(ACC+k)}, {v(vT2)}")
    LBL(f"L_nomax{tag}")
    A(f"v_fma_f32 {v(vPA)}, {v(vSA)}, {sC}, -{v(vMC)}")
    A(f"v_fma_f32 {v(vPB)}, {v(vSB)}, {sC}, -{v(vMC)}")
    A(f"v_exp_f32 {v(vPA)}, {v(vPA)}")
    A(f"v_exp_f32 {v(vPB)}, {v(vPB)}")
    A("s_nop 0")
    A(f"v_cvt_pk_bf16_f32 {v(vT0)}, {v(vPA)}, {v(vPA)}")
    A(f"v_cvt_pk_bf16_f32 {v(vT1)}, {v(vPB)}, {v(vPB)}")
    for d in range(4): A(f"v_and_b32 {v(AOP+d)}, {v(vT0)}, {v(MASK+d)}")
    for d in range(4): A(f"v_and_b32 {v(AOP+4+d)}, {v(vT1)}, {v(MASK+d)}")
    A(f"v_add_f32 {v(vL)}, {v(vL)}, {v(vPA)}")
    A(f"v_add_f32 {v(vL)}, {v(vL)}, {v(vPB)}")
    A("s_waitcnt vmcnt(12)" if not drain else "s_nop 0")
    A(f"v_mfma_f32_16x16x32_bf16 {vr(ACC,4)}, {vr(AOP,4)}, {vr(V,4)}, {vr(ACC,4)}")
    A(f"v_mfma_f32_16x16x32_bf16 {vr(ACC+4,4)}, {vr(AOP,4)}, {vr(V+4,4)}, {vr(ACC+4,4)}")
    A(f"v_mfma_f32_16x16x32_bf16 {vr(ACC,4)}, {vr(AOP+4,4)}, {vr(V+8,4)}, {vr(ACC,4)}")
    A(f"v_mfma_f32_16x16x32_bf16 {vr(ACC+4,4)}, {vr(AOP+4,4)}, {vr(V+12,4)}, {vr(ACC+4,4)}")
    if drain: return
    issue_V(st)
    A(f"s_cmp_eq_u32 {sPEND}, 0")
    A(f"s_cbranch_scc1 L_nopend{tag}")
    C("the piece fetched from the head's global counter becomes NEXT")
    A("s_waitcnt lgkmcnt(0)")
    A(f"s_sub_u32 {sFET}, {sFET}, {sCB}")
    A(f"s_min_u32 {sFET}, {sFET}, 0x4000")
    A(f"s_lshr_b32 s12, {sFET}, {5+LHP}")
    A(f"s_mul_i32 s12, s12, {MD*ROW}")
    A(f"s_and_b32 s13, {sFET}, {NP-1}")
    A(f"s_lshl_b32 s13, s13, {LCW}")
    A("s_add_u32 s12, s12, s13")
    A(f"s_add_u32 s12, s12, {RSr*ROW}")
    A("s_lshl_b32 s13, s12, 19")
    A(f"s_or_b32 s13, s13, {MD<<12}")
    A("s_cmp_ge_u32 s12, 8192")
    A(f"s_cselect_b32 {sFET}, 0xfff80001, s13")
    A(f"v_mov_b32 {v(vT0)}, {sFET}")
    A(f"ds_write_b32 {v(vZ)}, {v(vT0)} offset:{NEXT}")
    A(f"s_mov_b32 {sPEND}, 0")
    LBL(f"L_nopend{tag}")

def slow(tag):
    LBL(f"L_slow{tag}")
    A("s_cmp_eq_u32 s12, 0x1fff")
    A(f"s_cbranch_scc1 L_drain{tag}")
    A("s_cmp_eq_u32 s13, s6")
    A(f"s_cbranch_scc1 L_inst{tag}")
    C("chunk exhausted, another wave installs the next one: watch the word, then draw again")
    A("s_lshr_b32 s7, s14, 12")
    A("s_mov_b32 s13, 4000000")
    LBL(f"L_retry{tag}")
    A("s_sleep 1")
    A(f"ds_read_b32 {v(vT0)}, {v(vZ)} offset:{TKT}")
    A("s_waitcnt lgkmcnt(0)")
    A(f"v_readfirstlane_b32 s12, {v(vT0)}")
    A("s_lshr_b32 s12, s12, 12")
    A("s_cmp_lg_u32 s12, s7")
    A(f"s_cbranch_scc1 L_redraw{tag}")
    A("s_sub_u32 s13, s13, 1")
    A("s_cmp_lg_u32 s13, 0")
    A(f"s_cbranch_scc1 L_retry{tag}")
    A(f"s_branch L_drain{tag}")
    LBL(f"L_redraw{tag}")
    A("s_mov_b64 exec, 1")
    A(f"ds_add_rtn_u32 {v(vTK)}, {v(vZ)}, {v(vONE)} offset:{TKT}")
    A("s_mov_b64 exec, -1")
    A(f"s_branch L_chk{tag}")
    LBL(f"L_inst{tag}")
    A("s_mov_b32 s13, 4000000")
    LBL(f"L_instw{tag}")
    A(f"ds_read_b32 {v(vT0)}, {v(vZ)} offset:{NEXT}")
    A("s_waitcnt lgkmcnt(0)")
    A(f"v_readfirstlane_b32 s12, {v(vT0)}")
    A("s_cmp_lg_u32 s12, -1")
    A(f"s_cbranch_scc1 L_instg{tag}")
    A("s_sleep 1")
    A("s_sub_u32 s13, s13, 1")
    A("s_cmp_lg_u32 s13, 0")
    A(f"s_cbranch_scc1 L_instw{tag}")
    A("s_mov_b32 s12, 0xfff80001")
    LBL(f"L_instg{tag}")
    A("s_cmp_eq_u32 s12, 0xfff80001")
    A(f"s_cbranch_scc0 L_instv{tag}")
    A(f"v_mov_b32 {v(vT0)}, s12")
    A(f"ds_write_b32 {v(vZ)}, {v(vT0)} offset:{TKT}")
    A(f"s_branch L_drain{tag}")
    LBL(f"L_instv{tag}")
    C("valid chunk s12 (packed): install it (this wave takes slot 0), fetch the one after it")
    A(f"v_mov_b32 {v(vT1)}, -1")
    A(f"s_mov_b32 {sFET}, 1")
    A(f"s_atomic_add {sFET}, {pWS}, {sCOFF} glc")
    A(f"s_mov_b32 {sPEND}, 1")
    A(f"ds_write_b32 {v(vZ)}, {v(vT1)} offset:{NEXT}")
    A("s_or_b32 s13, s12, 1")
    A(f"v_mov_b32 {v(vT0)}, s13")
    A(f"ds_write_b32 {v(vZ)}, {v(vT0)} offset:{TKT}")
    A("s_lshr_b32 s12, s12, 19")
    A("s_mov_b32 s13, 0")
    A(f"s_branch L_ok{tag}")

LBL("L_loop")
tile(0, "0")
tile(1, "1")
A("s_branch L_loop")
slow("0")
slow("1")
LBL("L_drain1")
tile(1, "d1", drain=True)
tile(0, "d1b", drain=True)
A("s_branch L_loopend")
LBL("L_drain0")
tile(0, "d0", drain=True)
tile(1, "d0b", drain=True)
LBL("L_loopend")
stamp(2)
if OPT["NOTAIL"] == 1: A("s_endpgm")

C("===== T1: combine the waves of this workgroup, per head =====")
xrow_allreduce("v_add_f32", [vL], [vT0])
C("O -> LDS : OBUF + wave*2048 + ((l>>5)*256 + 8n + 4*((l>>4)&1))*4")
A(f"v_lshrrev_b32 {v(vT1)}, 5, {v(vLANE)}")
A(f"v_lshlrev_b32 {v(vT1)}, 10, {v(vT1)}")
A(f"v_lshl_add_u32 {v(vT1)}, {v(vN)}, 5, {v(vT1)}")
A(f"v_and_b32 {v(vT2)}, 1, {v(vG)}")
A(f"v_lshl_add_u32 {v(vT1)}, {v(vT2)}, 4, {v(vT1)}")
A(f"s_lshl_b32 s12, {sWAVE}, 11")
A(f"v_add_u32 {v(vT1)}, s12, {v(vT1)}")
A(f"ds_write_b128 {v(vT1)}, {vr(ACC,4)} offset:{OBUF}")
A(f"ds_write_b128 {v(vT1)}, {vr(ACC+4,4)} offset:{OBUF+512}")
C("(Mc,l) from lanes 0 and 8: ML + ((sel*2+qh)*WPH + wl)*8")
A(f"v_mul_u32_u24 {v(vT1)}, {WPH}, {v(vLANE)}")
A(f"s_lshr_b32 s12, {sWAVE}, {LHP}")
A(f"s_mul_i32 s13, {sSEL}, {2*WPH}")
A("s_add_u32 s12, s12, s13")
A("s_lshl_b32 s12, s12, 3")
A(f"v_add_u32 {v(vT1)}, s12, {v(vT1)}")
A("s_mov_b64 exec, 0x101")
A(f"ds_write_b64 {v(vT1)}, {vr(vMC,2)} offset:{ML}")
A("s_mov_b64 exec, -1")
C("addresses for the combine (thread t: sel = t>>9, qh = (t>>8)&1, dim = t&255)")
A(f"s_lshr_b32 s7, {sWAVE}, 3")
A(f"s_mul_i32 s12, s7, {NG}")
A(f"s_add_u32 s12, s12, {sPG}")
A(f"s_lshl_b32 s12, s12, {5+LHP}")
A(f"s_add_u32 s12, s12, {sJ}")
A("s_lshl_b32 s12, s12, 13")
A("s_add_u32 s60, s42, s12"); A("s_addc_u32 s61, s43, 0")
A("v_lshrrev_b32 v60, 8, v0")
A(f"v_mul_u32_u24 v60, {WPH*8}, v60")
A("v_and_b32 v63, 511, v0")
A("s_lshl_b32 s13, s7, 11")
A("v_lshlrev_b32 v62, 2, v63")
A("v_add_u32 v62, s13, v62")
A(f"v_mov_b32 v45, {sTAG}"); A(f"v_mov_b32 v41, {sTAG}"); A(f"v_mov_b32 v43, {sTAG}")
A("s_waitcnt vmcnt(0) lgkmcnt(0)")
A("s_barrier")
if HP == 1:
    A(f"s_cmp_ge_u32 {sWAVE}, 8")
    A("s_cbranch_scc1 L_t3_check")
for k in range(WPH//2):
    A(f"ds_read_b128 {vr(64+4*k,4)}, v60 offset:{ML+16*k}")
for k in range(WPH):
    A(f"ds_read_b32 {v(96+k)}, v62 offset:{OBUF+2048*HP*k}")
A("v_lshlrev_b32 v62, 3, v63")
A(f"s_waitcnt lgkmcnt({min(15,WPH)})")
A("v_max3_f32 v40, v64, v66, v68")
for k in range(3, WPH-1, 2): A(f"v_max3_f32 v40, v40, {v(64+2*k)}, {v(66+2*k)}")
A(f"v_max_f32 v40, v40, {v(64+2*(WPH-1))}")
for k in range(WPH): A(f"v_sub_f32 {v(64+2*k)}, {v(64+2*k)}, v40")
for k in range(WPH): A(f"v_exp_f32 {v(64+2*k)}, {v(64+2*k)}")
A("s_waitcnt lgkmcnt(0)")
A("v_mul_f32 v44, v64, v96")
for k in range(1, WPH): A(f"v_fmac_f32 v44, {v(64+2*k)}, {v(96+k)}")
if OPT["W16"]:
    A(f"v_mov_b32 v47, {sTAG}")
    A("s_nop 0")
    A(f"v_mov_b32_dpp v46, v44 quad_perm:[1,1,3,3] {DPPALL}")
    A("s_mov_b32 exec_lo, 0x55555555")
    A("s_mov_b32 exec_hi, 0x55555555")
    A("global_store_dwordx4 v62, v[44:47], s[60:61] sc1")
    A("s_mov_b64 exec, -1")
else:
    A("global_store_dwordx2 v62, v[44:45], s[60:61] sc1")
A("v_mul_f32 v42, v64, v65")
for k in range(1, WPH): A(f"v_fmac_f32 v42, {v(64+2*k)}, {v(65+2*k)}")
A("v_and_b32 v62, 255, v0")
A("v_lshrrev_b32 v60, 4, v63")
A("v_add_u32 v60, 0x1000, v60")
A("v_cmp_eq_u32 vcc, 0, v62")
A("s_and_saveexec_b64 s[62:63], vcc")
A("s_cbranch_execz L_t1_noml")
A("global_store_dwordx4 v60, v[40:43], s[60:61] sc1")
LBL("L_t1_noml")
A("s_mov_b64 exec, s[62:63]")
if OPT["NOTAIL"] == 2: A("s_endpgm")
A(f"s_cmp_lg_u32 {sWAVE}, 0")
A("s_cbranch_scc1 L_t3_check")

NK = 8*HP
C("===== T2 (wave 0): combine the head's partials for 16 o-dims, out-projection =====")
A(f"v_mul_u32_u24 v60, 896, {v(vG)}")
A(f"v_lshl_add_u32 v60, {v(vN)}, 4, v60")
for jj in range(4):
    for cb in range(4):
        A(f"ds_read_b128 {vr(64+16*jj+4*cb,4)}, v60 offset:{WOBUF+jj*3584+cb*256}")
if not OPT["W16"]:
    C("O granules: slot (hT*NP + sq*NK + k), offset (16 sl + d)*8")
    A(f"v_lshlrev_b32 v60, {13+3+LHP}, {v(vG)}")
    A(f"v_lshl_add_u32 v60, {v(vN)}, 3, v60")
    A(f"s_lshl_b32 s13, {sHT}, {13+5+LHP}")
    A(f"s_lshl_b32 s14, {sSL}, 7")
    A("s_add_u32 s14, s13, s14")
    A("v_add_u32 v60, s14, v60")
    A(f"v_and_b32 v62, {NP-1}, {v(vLANE)}")
    A("v_lshlrev_b32 v62, 13, v62")
    A(f"s_lshr_b32 s14, {sSL}, 4")
    A("s_lshl_b32 s14, s14, 4")
    A("s_add_u32 s13, s13, s14")
    A("s_add_u32 s13, s13, 0x1000")
    A("v_add_u32 v62, s13, v62")
    OR_, MLR = 16, 48
    loads = ["s_mov_b32 s13, 0"]
    for k in range(NK):
        loads.append(f"buffer_load_dwordx2 {vr(OR_+2*k,2)}, v60, {srdWS}, s13 offen sc1")
        if k < NK-1: loads.append("s_add_u32 s13, s13, 8192")
    loads.append(f"buffer_load_dwordx4 {vr(MLR,4)}, v62, {srdWS}, 0 offen sc1")
    poll("t2", loads, [OR_+1+2*k for k in range(NK)] + [MLR+1, MLR+3])
    stamp(3)
    sw = (16,) if HP == 1 else (32, 16)
    A(f"v_mov_b32 v52, {v(MLR)}")
    row_allreduce("v_max_f32", [52])
    xrow_allreduce("v_max_f32", [52], [53], which=sw)
    A(f"v_sub_f32 {v(MLR)}, {v(MLR)}, v52")
    A(f"v_exp_f32 {v(MLR)}, {v(MLR)}")
    A("s_nop 0")
    A(f"v_mul_f32 {v(MLR+2)}, {v(MLR+2)}, {v(MLR)}")
    row_allreduce("v_add_f32", [MLR+2])
    xrow_allreduce("v_add_f32", [MLR+2], [53], which=sw)
    A(f"v_rcp_f32 {v(MLR+2)}, {v(MLR+2)}")
    A(f"v_lshlrev_b32 v62, 2, {v(vLANE)}")
    A(f"v_mul_f32 {v(MLR)}, {v(MLR)}, {v(MLR+2)}")
    if HP == 1: A("s_mov_b32 exec_hi, 0")
    A(f"ds_write_b32 v62, {v(MLR)} offset:{WGT}")
    if HP == 1: A("s_mov_b64 exec, -1")
    A(f"v_lshlrev_b32 v62, {5+LHP}, {v(vG)}")
    A("s_waitcnt lgkmcnt(0)")
    WR = [8, 12, 52, 56]
    for q4 in range(NK//4):
        A(f"ds_read_b128 {vr(WR[q4],4)}, v62 offset:{WGT+16*q4}")
    A("s_waitcnt lgkmcnt(0)")
    A(f"v_mul_f32 v60, v8, {v(OR_)}")
    for k in range(1, NK): A(f"v_fmac_f32 v60, {v(WR[k//4]+k%4)}, {v(OR_+2*k)}")
    xrow_allreduce("v_add_f32", [60], [61])
    A("v_cvt_pk_bf16_f32 v60, v60, v60")
    A(f"v_lshlrev_b32 v62, 2, {v(vG)}")
    for jj in range(4):
        A(f"v_add_u32 v61, {16*jj}, v62")
        A(f"ds_bpermute_b32 {v(40+jj)}, v61, v60")
    A("s_waitcnt lgkmcnt(0)")
else:
    NK4 = 4*HP
    C("O granule pairs: lane (d2 = l&7, sg = l>>3): slots hT*NP + sg*NK4 + k, offset (16 sl + 2 d2)*8")
    A(f"v_lshrrev_b32 v61, 3, {v(vLANE)}")
    A(f"v_lshlrev_b32 v60, {13+2+LHP}, v61")
    A(f"v_and_b32 v63, 7, {v(vLANE)}")
    A("v_lshl_add_u32 v60, v63, 4, v60")
    A(f"s_lshl_b32 s13, {sHT}, {13+5+LHP}")
    A(f"s_lshl_b32 s14, {sSL}, 7")
    A("s_add_u32 s14, s13, s14")
    A("v_add_u32 v60, s14, v60")
    A(f"v_and_b32 v62, {NP-1}, {v(vLANE)}")
    A("v_lshlrev_b32 v62, 13, v62")
    A(f"s_lshr_b32 s14, {sSL}, 4")
    A("s_lshl_b32 s14, s14, 4")
    A("s_add_u32 s13, s13, s14")
    A("s_add_u32 s13, s13, 0x1000")
    A("v_add_u32 v62, s13, v62")
    C("selector: replicate low (g even) or high (g odd) half")
    A(f"v_and_b32 v63, 1, {v(vG)}")
    A("v_mul_u32_u24 v63, 0x0202, v63")
    A("v_lshl_or_b32 v63, v63, 16, v63")
    A("v_add_u32 v63, 0x01000100, v63")
    OR_, MLR = 16, 48
    loads = ["s_mov_b32 s13, 0"]
    for k in range(NK4):
        loads.append(f"buffer_load_dwordx4 {vr(OR_+4*k,4)}, v60, {srdWS}, s13 offen sc1")
        if k < NK4-1: loads.append("s_add_u32 s13, s13, 8192")
    loads.append(f"buffer_load_dwordx4 {vr(MLR,4)}, v62, {srdWS}, 0 offen sc1")
    poll("t2", loads, [OR_+1+2*k for k in range(2*NK4)] + [MLR+1, MLR+3])
    stamp(3)
    sw = (16,) if HP == 1 else (32, 16)
    A(f"v_mov_b32 v52, {v(MLR)}")
    row_allreduce("v_max_f32", [52])
    xrow_allreduce("v_max_f32", [52], [53], which=sw)
    A(f"v_sub_f32 {v(MLR)}, {v(MLR)}, v52")
    A(f"v_exp_f32 {v(MLR)}, {v(MLR)}")
    A("s_nop 0")
    A(f"v_mul_f32 {v(MLR+2)}, {v(MLR+2)}, {v(MLR)}")
    row_allreduce("v_add_f32", [MLR+2])
    xrow_allreduce("v_add_f32", [MLR+2], [53], which=sw)
    A(f"v_rcp_f32 {v(MLR+2)}, {v(MLR+2)}")
    A(f"v_lshlrev_b32 v62, 2, {v(vLANE)}")
    A(f"v_mul_f32 {v(MLR)}, {v(MLR)}, {v(MLR+2)}")
    if HP == 1: A("s_mov_b32 exec_hi, 0")
    A(f"ds_write_b32 v62, {v(MLR)} offset:{WGT}")
    if HP == 1: A("s_mov_b64 exec, -1")
    A(f"v_lshlrev_b32 v62, {4+LHP}, v61")
    A("s_waitcnt lgkmcnt(0)")
    for q4 in range(NK4//4):
        A(f"ds_read_b128 {vr(8+4*q4,4)}, v62 offset:{WGT+16*q4}")
    A("s_waitcnt lgkmcnt(0)")
    A(f"v_mul_f32 v52, v8, {v(OR_)}")
    A(f"v_mul_f32 v53, v8, {v(OR_+2)}")
    for k in range(1, NK4):
        A(f"v_fmac_f32 v52, {v(8+k)}, {v(OR_+4*k)}")
        A(f"v_fmac_f32 v53, {v(8+k)}, {v(OR_+4*k+2)}")
    A("s_nop 0")
    A(f"v_add_f32_dpp v52, v52, v52 row_ror:8 {DPPALL}")
    A(f"v_add_f32_dpp v53, v53, v53 row_ror:8 {DPPALL}")
    xrow_allreduce("v_add_f32", [52, 53], [54, 55])
    A("v_cvt_pk_bf16_f32 v60, v52, v53")
    A(f"v_lshrrev_b32 v62, 1, {v(vG)}")
    A("v_lshlrev_b32 v62, 2, v62")
    for jj in range(4):
        A(f"v_add_u32 v61, {8*jj}, v62")
        A(f"ds_bpermute_b32 {v(40+jj)}, v61, v60")
    A("s_waitcnt lgkmcnt(0)")
    for jj in range(4):
        A(f"v_perm_b32 {v(40+jj)}, {v(40+jj)}, {v(40+jj)}, v63")
for jj in range(4):
    for d in range(4):
        A(f"v_and_b32 {v(44+4*jj+d)}, {v(40+jj)}, {v(MASK+d)}")
A("s_nop 1")
for jj in range(4):
    for cb in range(4):
        src = "0" if jj == 0 else vr(8+4*cb, 4)
        A(f"v_mfma_f32_16x16x32_bf16 {vr(8+4*cb,4)}, {vr(44+4*jj,4)}, {vr(64+16*jj+4*cb,4)}, {src}")
C("a-vector store address: AVEC + wg*4096 + (8n+4G)*8 + cb*1024")
A(f"v_lshlrev_b32 v62, 6, {v(vN)}")
A(f"v_lshl_add_u32 v62, {v(vG)}, 5, v62")
A("s_lshl_b32 s13, s2, 12")
A(f"s_add_u32 s13, s13, {AVEC}")
A("v_add_u32 v62, s13, v62")
for t in range(8):
    A(f"v_mov_b32 {v(25+4*t)}, {sTAG}")
    A(f"v_mov_b32 {v(27+4*t)}, {sTAG}")
A("s_nop 3")
for cb in range(4):
    for hfp in range(2):
        t = 2*cb + hfp
        A(f"v_mov_b32 {v(24+4*t)}, {v(8+4*cb+2*hfp)}")
        A(f"v_mov_b32 {v(26+4*t)}, {v(8+4*cb+2*hfp+1)}")
A("s_mov_b32 exec_hi, 0")
for cb in range(4):
    if cb == 3: A("s_mov_b64 exec, 0x00ff00ff")
    for hfp in range(2):
        t = 2*cb + hfp
        A(f"global_store_dwordx4 v62, {vr(24+4*t,4)}, {pWS} offset:{cb*1024+16*hfp} sc1")
A("s_mov_b64 exec, -1")
stamp(4)

LBL("L_t3_check")
if OPT["NOTAIL"]: A("s_endpgm")
A(f"s_cmp_lt_u32 {sIDX}, 28")
A("s_cbranch_scc1 L_end")
A(f"s_sub_u32 s6, {sIDX}, 28")
A("s_lshl_b32 s6, s6, 3")
A(f"s_add_u32 s6, s6, {sX}")
A("s_cmp_ge_u32 s6, 28")
A("s_cbranch_scc1 L_end")
C("===== T3: final reduce for columns 16f..16f+15 =====")
A("v_lshrrev_b32 v60, 3, v0")
A("v_lshlrev_b32 v60, 12, v60")
A("v_and_b32 v61, 7, v0")
A("v_lshl_add_u32 v60, v61, 4, v60")
A("s_lshl_b32 s13, s6, 7")
A("v_add_u32 v60, s13, v60")
A("s_lshl_b32 s13, s6, 5")
A("v_lshlrev_b32 v61, 2, v61")
A("v_add_u32 v61, s13, v61")
A(f"global_load_dword v56, v61, {pB2}")
A(f"s_mov_b32 s64, {AVEC}"); A(f"s_mov_b32 s65, {AVEC+128*VSTR}"); A(f"s_mov_b32 s66, {BVEC}"); A(f"s_mov_b32 s67, {BVEC+128*VSTR}")
A(f"s_cmp_ge_u32 {sWAVE}, 12")
A("s_cbranch_scc1 L_t3_p3")
loads = [f"buffer_load_dwordx4 {vr(16+4*k,4)}, v60, {srdWS}, s{64+k} offen sc1" for k in range(4)]
poll("t3a", loads, [17+2*k for k in range(8)])
A("s_branch L_t3_sum")
LBL("L_t3_p3")
A("v_mov_b32 v28, 0"); A("v_mov_b32 v30, 0")
poll("t3b", loads[:3], [17+2*k for k in range(6)])
LBL("L_t3_sum")
stamp(5)
A("v_add_f32 v40, v16, v20"); A("v_add_f32 v41, v18, v22"); A("v_add_f32 v42, v24, v28"); A("v_add_f32 v43, v26, v30")
for r in range(40, 44): A(f"v_add_f32_dpp {v(r)}, {v(r)}, {v(r)} row_ror:8 {DPPALL}")
xrow_allreduce("v_add_f32", [40, 41, 42, 43], [44, 45, 46, 47])
A(f"v_lshlrev_b32 v62, 4, {v(vLANE)}")
A(f"s_lshl_b32 s13, {sWAVE}, 7")
A("v_add_u32 v62, s13, v62")
A("s_mov_b64 exec, 0xff")
A(f"ds_write_b128 v62, v[40:43] offset:{RED}")
A("s_mov_b64 exec, -1")
A("s_waitcnt lgkmcnt(0)")
A("s_barrier")
A(f"s_cmp_lg_u32 {sWAVE}, 0")
A("s_cbranch_scc1 L_end")
A(f"v_lshlrev_b32 v62, 4, {v(vLANE)}")
A(f"ds_read_b128 v[40:43], v62 offset:{RED}")
A(f"ds_read_b128 v[44:47], v62 offset:{RED+1024}")
A("v_mov_b32 v62, 0")
A(f"ds_read_b32 v57, v62 offset:{GATE}")
A("s_waitcnt lgkmcnt(0)")
for k in range(4): A(f"v_add_f32 {v(40+k)}, {v(40+k)}, {v(44+k)}")
for r in range(40, 44): A(f"v_add_f32_dpp {v(r)}, {v(r)}, {v(r)} row_ror:8 {DPPALL}")
xrow_allreduce("v_add_f32", [40, 41, 42, 43], [44, 45, 46, 47])
C("epilogue with the reference's bf16 roundings")
A("v_cvt_pk_bf16_f32 v40, v40, v41")
A("v_cvt_pk_bf16_f32 v42, v42, v43")
unpack(44, 45, 42); unpack(46, 47, 56)
A("v_add_f32 v44, v44, v46"); A("v_add_f32 v45, v45, v47")
A("v_cvt_pk_bf16_f32 v42, v44, v45")
A("v_sub_f32 v58, 1.0, v57")
rnd(58)
unpack(44, 45, 40)
A("v_mul_f32 v44, v44, v57"); A("v_mul_f32 v45, v45, v57")
A("v_cvt_pk_bf16_f32 v40, v44, v45")
unpack(46, 47, 42)
A("v_mul_f32 v46, v46, v58"); A("v_mul_f32 v47, v47, v58")
A("v_cvt_pk_bf16_f32 v42, v46, v47")
unpack(44, 45, 40); unpack(46, 47, 42)
A("v_add_f32 v44, v44, v46"); A("v_add_f32 v45, v45, v47")
A("v_cvt_pk_bf16_f32 v40, v44, v45")
A("s_mov_b64 exec, 0xff")
A(f"global_store_dword v61, v40, {pOUT}")
A("s_cmp_lg_u32 s6, 0")
A("s_cbranch_scc1 L_noepoch")
A(f"s_add_u32 {sEP}, {sEP}, 1")
A(f"v_mov_b32 v44, {sEP}")
A(f"v_mov_b32 v45, {EPOCH}")
A("s_mov_b64 exec, 1")
A(f"global_store_dword v45, v44, {pWS} sc1")
LBL("L_noepoch")
A("s_mov_b64 exec, -1")
stamp(6)
LBL("L_end")
A("s_endpgm")

hdr = open("cdna_kernels/%s.s.ref" % NAME).read().split("; Override launch geometry")[0]
out = hdr
out += "; generated by gen/gen6.py (hand-written generator)\n"
out += f"; @launch grid=(256,1,1) block=(1024,1,1) lds={LDS_BYTES}\n"
out += '.amdgcn_target "amdgcn-amd-amdhsa--gfx950"\n.text\n'
out += f".globl {NAME}_kernel\n.p2align 8\n.type {NAME}_kernel,@function\n"
out += "\n".join(L) + "\n"
out += f""".section .rodata,"a"
.p2align 6
.amdhsa_kernel {NAME}_kernel
  .amdhsa_next_free_vgpr 128
  .amdhsa_next_free_sgpr 96
  .amdhsa_accum_offset 128
  .amdhsa_group_segment_fixed_size 0
  .amdhsa_kernarg_size 112
  .amdhsa_user_sgpr_count 2
  .amdhsa_user_sgpr_kernarg_segment_ptr 1
  .amdhsa_system_sgpr_workgroup_id_x 1
.end_amdhsa_kernel
"""
open(sys.argv[1], "w").write(out)
print("LDS", LDS_BYTES, "instrs", sum(1 for l in L if l.startswith("    ") and not l.strip().startswith(";")))
```

```python
import struct, sys, math

NAME = "gated_mix__gqa_block_cached__dense_activation_gelu__decode"
def f32(x): return "0x%08x" % struct.unpack("<I", struct.pack("<f", x))[0]

OPT = dict(POL="nt", VPOL="nt", SLEEP=2, STAMP=0, SPOL="nt", PRIO=1, NACT=2, RSR=48, HP=1, NOTAIL=0, PT=4, W16=1, CWO=4, ROT=2048, NJ=0, JR=56, JC=0, PM=1, BS=1, T2F=1, T3F=1)
for a in sys.argv[2:]:
    k, v_ = a.split("=")
    OPT[k] = v_ if not v_.lstrip("-").isdigit() else int(v_)
SPOL = OPT["SPOL"].replace("_", " ") if OPT["SPOL"] != "none" else ""
HP = OPT["HP"]; LHP = HP.bit_length()-1; NG = 8//HP; NP = 32*HP; WPH = 16//HP
NACT = OPT["NACT"]; CW = OPT["CWO"] or NACT//HP; LCW = CW.bit_length()-1; ROW = NP*CW; LROW = ROW.bit_length()-1
NR = 8192//ROW; R0 = 2*WPH//CW; RSr = OPT["RSR"]*NR//64
MD = max(1, OPT["PT"]//CW); ML_ = max(1, 8//CW)
assert CW >= 1 and (NR-RSr) % MD == 0 and RSr-R0-ML_ > 0 and RSr-R0-ML_ < 128

L = []
def A(s): L.append("    " + s)
def LBL(s): L.append(s + ":")
def C(s): L.append("    ; " + s)

QBF, TKB, GATE, ML, WGT, RED, WOBUF, OBUF = 0, 2048, 2096, 2176, 2432, 2688, 4736, 19456
TKT, NEXT, CBASE, QFLAG = TKB, TKB+4, TKB+8, TKB+12
LDS_BYTES = OBUF + 32768
MCNT = GATE + 4
PART = 0
AVEC, BVEC, VSTR = 0x400000, 0x500000, 4096
QX, CNTB, EPOCH = 0x600000, 0x610000, 0x1F00
sWAVE, sPG, sJ, sC, sTAG, sJJ, sEP = "s3", "s4", "s5", "s9", "s10", "s11", "s15"
sBASE, sHW, sX, sIDX, sPEND, sFET, sCOFF, sCB, sHT, sSL, sSEL, sCB2 = "s78", "s79", "s80", "s81", "s82", "s83", "s84", "s85", "s86", "s87", "s88", "s89"
sROT = "s90"
pX, pK, pV, pWQ, pWO, pW1, pB1, pW2, pB2, pGW, pOUT, pDBG, pWS = (
    "s[16:17]", "s[18:19]", "s[20:21]", "s[22:23]", "s[24:25]", "s[28:29]", "s[30:31]",
    "s[32:33]", "s[34:35]", "s[36:37]", "s[38:39]", "s[40:41]", "s[42:43]")
srdK, srdV, srdT, srdWS = "s[44:47]", "s[48:51]", "s[52:55]", "s[56:59]"
vG, vLANE, vN = 1, 2, 3
MASK = 4
ACC = 8
Q = 16
vT2, vMR = 32, 33
vMC, vL = 34, 35
D = 36
vTA, vTB, vPK, vSA, vSB, vTM, vPA, vPB = 40, 41, 42, 43, 44, 45, 46, 47
AOP = 48
vT0, vT1, vKV, vLP = 56, 57, 58, 59
vTK, vONE, vZ = 60, 61, 62
STG = 64
def v(i): return "v%d" % i
def vr(i, n): return "v[%d:%d]" % (i, i + n - 1)
KOFF = [0, 256, 2048, 2304]
def issue_K(st):
    for k in range(4):
        A(f"buffer_load_dwordx4 {vr(STG+32*st+4*k,4)}, {v(vKV)}, {srdK}, 0 offen offset:{KOFF[k]} {OPT['POL'].replace('_',' ')}")
def issue_V(st):
    for k in range(4):
        A(f"buffer_load_dwordx4 {vr(STG+32*st+16+4*k,4)}, {v(vKV)}, {srdV}, 0 offen offset:{KOFF[k]} {OPT['VPOL'].replace('_',' ')}")
DPPALL = "row_mask:0xf bank_mask:0xf"
def row_allreduce(op, regs, pats=("quad_perm:[1,0,3,2]", "quad_perm:[2,3,0,1]", "row_half_mirror", "row_mirror")):
    for pat in pats:
        if len(regs) < 3: A("s_nop 1")
        for r in regs:
            A(f"{op}_dpp {v(r)}, {v(r)}, {v(r)} {pat} {DPPALL}")
def xrow_allreduce(op, regs, tmps, which=(32, 16)):
    for w in which:
        for r, t in zip(regs, tmps): A(f"v_mov_b32 {v(t)}, {v(r)}")
        A("s_nop 1")
        for r, t in zip(regs, tmps): A(f"v_permlane{w}_swap_b32 {v(r)}, {v(t)}")
        for r, t in zip(regs, tmps): A(f"{op} {v(r)}, {v(r)}, {v(t)}")
def poll(name, loads, tags):
    A("s_mov_b32 s12, 200000")
    LBL(f"L_poll_{name}")
    for l in loads: A(l)
    A("s_waitcnt vmcnt(0)")
    for t in tags: A(f"v_xor_b32 {v(t)}, {sTAG}, {v(t)}")
    regs = list(tags)
    while len(regs) > 1:
        nxt = []
        while len(regs) >= 3:
            A(f"v_or3_b32 {v(regs[0])}, {v(regs[0])}, {v(regs[1])}, {v(regs[2])}"); nxt.append(regs[0]); regs = regs[3:]
        if len(regs) == 2 and not nxt:
            A(f"v_or_b32 {v(regs[0])}, {v(regs[0])}, {v(regs[1])}"); nxt.append(regs[0]); regs = []
        regs = nxt + regs
    A(f"v_cmp_ne_u32 vcc, 0, {v(tags[0])}")
    A(f"s_cbranch_vccz L_done_{name}")
    A("s_mov_b64 exec, vcc")
    if OPT["SLEEP"]: A(f"s_sleep {OPT['SLEEP']}")
    A("s_sub_u32 s12, s12, 1")
    A("s_cmp_lg_u32 s12, 0")
    A(f"s_cbranch_scc1 L_poll_{name}")
    LBL(f"L_done_{name}")
    A("s_mov_b64 exec, -1")
def stamp(idx):
    if not OPT["STAMP"]: return
    A("s_memrealtime s[70:71]")
    A("s_waitcnt lgkmcnt(0)")
    A("v_mov_b32 v36, s70"); A("v_mov_b32 v37, s71")
    A("s_lshl_b32 s72, s2, 8")
    A(f"s_lshl_b32 s73, {sWAVE}, 4")
    A(f"s_add_u32 s72, s72, {0x800000 + idx*0x100000}")
    A("s_add_u32 s72, s72, s73")
    A("v_mov_b32 v38, s72")
    A("s_mov_b64 s[74:75], exec")
    A("s_mov_b64 exec, 1")
    A(f"global_store_dwordx2 v38, v[36:37], {pWS}")
    if idx == 0:
        A("s_getreg_b32 s70, hwreg(HW_REG_XCC_ID)")
        A("v_mov_b32 v36, s70")
        A(f"global_store_dword v38, v36, {pWS} offset:8")
    A("s_mov_b64 exec, s[74:75]")
def unpack(lo, hi, src):
    A(f"v_lshlrev_b32 {v(lo)}, 16, {v(src)}")
    A(f"v_and_b32 {v(hi)}, 0xffff0000, {v(src)}")
def rnd(r):
    A(f"v_cvt_pk_bf16_f32 {v(r)}, {v(r)}, {v(r)}")
    A(f"v_lshlrev_b32 {v(r)}, 16, {v(r)}")
def srd(base4, lo, hi, size):
    A(f"s_mov_b32 s{base4}, {lo}"); A(f"s_mov_b32 s{base4+1}, {hi}"); A(f"s_mov_b32 s{base4+2}, {size}"); A(f"s_mov_b32 s{base4+3}, 0x20000")
def tagcalc():
    A("s_waitcnt lgkmcnt(0)")
    A(f"s_mul_i32 {sTAG}, {sEP}, 0x9E3779B1")
    A(f"s_add_u32 {sTAG}, {sTAG}, 0x7F4A7C15")

LBL(NAME + "_kernel")
A("s_cmp_ge_u32 s2, 256")
A("s_cbranch_scc1 L_end")
A("s_load_dwordx16 s[16:31], s[0:1], 0")
A("s_load_dwordx8 s[32:39], s[0:1], 64")
A("s_load_dwordx4 s[40:43], s[0:1], 96")
A(f"v_lshrrev_b32 v1, 6, v0")
A(f"v_and_b32 {v(vLANE)}, 63, v0")
A(f"v_readfirstlane_b32 {sWAVE}, v1")
C("x = wg&7, idx = wg>>3 ; group pg serves heads pg + k*NG ; j = index inside the group")
A(f"s_and_b32 {sX}, s2, 7")
A(f"s_lshr_b32 {sIDX}, s2, 3")
A(f"s_lshr_b32 {sPG}, {sIDX}, {2+LHP}")
A(f"s_lshl_b32 {sJ}, {sX}, {2+LHP}")
A(f"s_and_b32 s6, {sIDX}, {4*HP-1}")
A(f"s_or_b32 {sJ}, {sJ}, s6")
A(f"s_and_b32 {sSEL}, {sWAVE}, {HP-1}")
A(f"s_mul_i32 {sHW}, {sSEL}, {NG}")
A(f"s_add_u32 {sHW}, {sHW}, {sPG}")
A(f"s_lshr_b32 s6, {sJ}, 5")
A(f"s_mul_i32 {sHT}, s6, {NG}")
A(f"s_add_u32 {sHT}, {sHT}, {sPG}")
A(f"s_and_b32 {sSL}, {sJ}, 31")
A(f"s_lshl_b32 {sCOFF}, {sHW}, 12")
A(f"s_add_u32 {sCOFF}, {sCOFF}, {CNTB}")
A(f"v_and_b32 {v(vN)}, 15, {v(vLANE)}")
A(f"v_lshrrev_b32 {v(vG)}, 4, {v(vLANE)}")
A(f"v_lshlrev_b32 {v(vLP)}, 9, {v(vG)}")
A(f"v_lshl_add_u32 {v(vLP)}, {v(vN)}, 4, {v(vLP)}")
C("column layout: local tile u -> tile (u/CW)*ROW + CW*j + u%CW ; first u = wave/HP")
A(f"s_lshr_b32 s7, {sWAVE}, {LHP}")
A(f"s_lshr_b32 s6, s7, {LCW}")
A(f"s_lshl_b32 s6, s6, {LROW}")
A(f"s_and_b32 s7, s7, {CW-1}")
A("s_add_u32 s6, s6, s7")
if OPT["JC"] == 0:
    A(f"s_lshl_b32 {sBASE}, {sJ}, {LCW}")
else:
    C("stream column: neighbouring columns on different XCDs")
    A(f"s_and_b32 {sBASE}, {sIDX}, {4*HP-1}")
    A(f"s_lshl_b32 {sBASE}, {sBASE}, 3")
    A(f"s_or_b32 {sBASE}, {sBASE}, {sX}")
    A(f"s_lshl_b32 {sBASE}, {sBASE}, {LCW}")
A(f"s_add_u32 s6, s6, {sBASE}")
if OPT["ROT"]:
    C("each head walks its keys from a different starting tile")
    A(f"s_mul_i32 {sROT}, {sHW}, {OPT['ROT']}")
    A(f"s_add_u32 s6, s6, {sROT}")
    A("s_add_u32 s7, s6, 512")
    A("s_and_b32 s6, s6, 8191")
    A("s_and_b32 s7, s7, 8191")
    A("s_lshl_b32 s91, s7, 12")
A("s_lshl_b32 s6, s6, 12")
A(f"v_add_u32 {v(vKV)}, s6, {v(vLP)}")
A("s_waitcnt lgkmcnt(0)")
A(f"s_load_dword {sEP}, {pWS}, {EPOCH}")
A(f"s_lshl_b32 s6, {sHW}, 25")
A("s_add_u32 s44, s18, s6"); A("s_addc_u32 s45, s19, 0"); A("s_mov_b32 s46, 0x2000000"); A("s_mov_b32 s47, 0x20000")
A("s_add_u32 s48, s20, s6"); A("s_addc_u32 s49, s21, 0"); A("s_mov_b32 s50, 0x2000000"); A("s_mov_b32 s51, 0x20000")
srd(56, "s42", "s43", "0x40000000")
stamp(0)
A(f"s_cmp_ge_u32 {sWAVE}, 3")
A("s_cbranch_scc1 L_kv0")
if OPT["PRIO"]: A("s_setprio 3")
A(f"s_cmp_eq_u32 {sWAVE}, 1")
A("s_cbranch_scc1 L_w1")
A(f"s_cmp_eq_u32 {sWAVE}, 2")
A("s_cbranch_scc1 L_w2")

C("===== wave 0: 16-column slice of q = x @ wq ; publish ; gather the group's q =====")
C("LDS may hold an earlier launch's flags: clear them before the start barrier")
A("v_mov_b32 v62, 0")
for k in range(HP): A(f"ds_write_b32 v62, v62 offset:{QFLAG+16*k}")
A(f"ds_write_b32 v62, v62 offset:{MCNT}")
srd(52, "s22", "s23", 448*8192)
A(f"v_lshrrev_b32 v60, 1, {v(vLANE)}")
A("v_lshlrev_b32 v61, 13, v60")
A(f"v_and_b32 v62, 1, {v(vLANE)}")
A("v_lshl_add_u32 v61, v62, 4, v61")
C("work counters of the group's heads: their value now is this launch's zero")
A(f"s_load_dword {sCB}, {pWS}, {sCOFF}")
if HP == 2:
    A(f"s_add_u32 s13, {sCOFF}, {NG*4096}")
    A(f"s_load_dword {sCB2}, {pWS}, s13")
A(f"s_lshl_b32 s12, {sHT}, 10")
A(f"s_lshl_b32 s13, {sSL}, 5")
A("s_add_u32 s12, s12, s13")
for k in range(14):
    A(f"buffer_load_dwordx4 {vr(64+4*k,4)}, v61, {srdT}, s12 offen {SPOL}")
    if k < 13: A(f"s_add_u32 s12, s12, {32*8192}")
A("v_lshlrev_b32 v60, 1, v60")
for k in range(14):
    A(f"global_load_ushort {v(16+k)}, v60, {pX} offset:{64*k}")
A("s_waitcnt lgkmcnt(0)")
A("s_barrier")
A("v_mov_b32 v62, 0")
A(f"s_add_u32 s13, {sBASE}, {R0*ROW}")
A("s_lshl_b32 s13, s13, 19")
A(f"s_or_b32 s13, s13, {(RSr-R0-ML_)<<12}")
A("v_mov_b32 v60, s13")
A(f"s_add_u32 s13, {sBASE}, {(RSr-ML_)*ROW}")
A("s_lshl_b32 s13, s13, 19")
A(f"s_or_b32 s13, s13, {ML_<<12}")
A("v_mov_b32 v61, s13")
for k in range(HP): A(f"ds_write_b64 v62, v[60:61] offset:{TKT+16*k}")
tagcalc()
A(f"v_mov_b32 v61, {sCB}")
A(f"ds_write_b32 v62, v61 offset:{CBASE}")
if HP == 2:
    A(f"v_mov_b32 v60, {sCB2}")
    A(f"ds_write_b32 v62, v60 offset:{CBASE+16}")
A("s_mov_b32 s13, 0x05040100")
A("s_mov_b32 s14, 0x07060302")
A("s_waitcnt vmcnt(0)")
for kp in range(7):
    A(f"v_lshl_or_b32 {v(16+2*kp)}, {v(17+2*kp)}, 16, {v(16+2*kp)}")
for kp in range(7):
    a, b = 64+8*kp, 68+8*kp
    for d in range(4):
        A(f"v_perm_b32 {v(48+2*d)}, {v(b+d)}, {v(a+d)}, s13")
        A(f"v_perm_b32 {v(49+2*d)}, {v(b+d)}, {v(a+d)}, s14")
    for c in range(8):
        A(f"v_dot2_f32_bf16 {v(40+c)}, {v(48+c)}, {v(16+2*kp)}, {'0' if kp==0 else v(40+c)}")
A("s_nop 2")
row_allreduce("v_add_f32", list(range(40, 48)), pats=("row_ror:8", "row_ror:4", "row_ror:2"))
xrow_allreduce("v_add_f32", list(range(40, 48)), list(range(48, 56)))
for k in range(4):
    A(f"v_cvt_pk_bf16_f32 {v(48+2*k)}, {v(40+2*k)}, {v(41+2*k)}")
    A(f"v_mov_b32 {v(49+2*k)}, {sTAG}")
A(f"v_lshlrev_b32 v60, 5, {v(vLANE)}")
A(f"s_lshl_b32 s13, {sSL}, 6")
A(f"s_lshl_b32 s14, {sHT}, 11")
A("s_add_u32 s13, s13, s14")
A(f"s_add_u32 s13, s13, {QX}")
A("v_add_u32 v61, s13, v60")
A(f"s_lshl_b32 s12, {sPG}, 11")
A(f"s_add_u32 s12, s12, {QX}")
A("v_add_u32 v60, s12, v60")
A("s_mov_b64 exec, 3")
A(f"global_store_dwordx4 v61, v[48:51], {pWS} sc1")
A(f"global_store_dwordx4 v61, v[52:55], {pWS} offset:16 sc1")
A("s_mov_b64 exec, -1")
stamp(11)
A(f"s_mov_b32 s13, {NG*2048}")
loads, tags = [], []
for k in range(HP):
    so = "0" if k == 0 else "s13"
    loads += [f"buffer_load_dwordx4 {vr(16+8*k,4)}, v60, {srdWS}, {so} offen sc1", f"buffer_load_dwordx4 {vr(20+8*k,4)}, v60, {srdWS}, {so} offen offset:16 sc1"]
    tags += [17+8*k, 19+8*k, 21+8*k, 23+8*k]
poll("q", loads, tags)
stamp(12)
A(f"v_lshlrev_b32 v62, 4, {v(vLANE)}")
for k in range(HP):
    b = 16+8*k
    A(f"v_mov_b32 {v(b+1)}, {v(b+2)}"); A(f"v_mov_b32 {v(b+2)}, {v(b+4)}"); A(f"v_mov_b32 {v(b+3)}, {v(b+6)}")
    A(f"ds_write_b128 v62, {vr(b,4)} offset:{QBF+1024*k}")
A("v_mov_b32 v62, 0")
A("v_mov_b32 v61, 1")
A("s_waitcnt lgkmcnt(0)")
for k in range(HP): A(f"ds_write_b32 v62, v61 offset:{QFLAG+16*k}")
A("s_branch L_kv")

LBL("L_w1")
A(f"s_cmp_ge_u32 {sIDX}, 28")
A("s_cbranch_scc1 L_gate")
C("===== wave 1: MLP slice f = 8jj..8jj+7 =====")
A(f"s_mul_i32 {sJJ}, {sX}, 28")
A(f"s_add_u32 {sJJ}, {sJJ}, {sIDX}")
srd(52, "s28", "s29", 448*3584)
A(f"s_lshl_b32 s13, {sJJ}, 4")
A(f"s_load_dwordx4 s[64:67], {pB1}, s13")
A(f"v_mul_u32_u24 v61, 3584, {v(vLANE)}")
for k in range(7):
    A(f"buffer_load_dwordx4 {vr(64+4*k,4)}, v61, {srdT}, s13 offen {SPOL}")
    if k < 6: A(f"s_add_u32 s13, s13, {64*3584}")
A(f"v_lshlrev_b32 v60, 1, {v(vLANE)}")
for k in range(7):
    A(f"global_load_ushort {v(16+k)}, v60, {pX} offset:{128*k}")
A(f"s_mul_i32 s12, {sJJ}, 7168")
A("s_add_u32 s12, s12, 3584")
A(f"v_lshlrev_b32 v62, 4, {v(vLANE)}")
A("v_add_u32 v62, s12, v62")
A("s_mov_b32 exec_hi, 0x00ffffff")
for rr in range(8):
    A(f"global_load_dwordx4 {vr(92+4*rr,4)}, v62, {pW2} offset:{rr*896-3584} {SPOL}")
A("s_mov_b64 exec, -1")
A("s_barrier")
tagcalc()
A("s_waitcnt vmcnt(8)")
for k in range(7):
    A(f"v_lshlrev_b32 {v(16+k)}, 16, {v(16+k)}")
    for d in range(4): unpack(48+2*d, 49+2*d, 64+4*k+d)
    for c in range(8):
        if k == 0: A(f"v_mul_f32 {v(40+c)}, {v(48+c)}, {v(16+k)}")
        else: A(f"v_fmac_f32 {v(40+c)}, {v(48+c)}, {v(16+k)}")
row_allreduce("v_add_f32", list(range(40, 48)))
xrow_allreduce("v_add_f32", list(range(40, 48)), list(range(48, 56)))
k2 = -2.0*math.sqrt(2.0/math.pi)*math.log2(math.e)
A(f"v_mov_b32 v56, {f32(k2)}")
A(f"s_mov_b32 s12, {f32(k2*0.044715)}")
for c in range(8):
    sreg = 64 + c//2
    if c % 2 == 0: A(f"s_lshl_b32 s13, s{sreg}, 16")
    else: A(f"s_and_b32 s13, s{sreg}, 0xffff0000")
    rnd(40+c)
    A(f"v_add_f32 {v(40+c)}, s13, {v(40+c)}")
    rnd(40+c)
for c in range(8): A(f"v_mul_f32 {v(48+c)}, {v(40+c)}, {v(40+c)}")
for c in range(8): A(f"v_fma_f32 {v(48+c)}, {v(48+c)}, s12, v56")
for c in range(8): A(f"v_mul_f32 {v(48+c)}, {v(48+c)}, {v(40+c)}")
for c in range(8): A(f"v_exp_f32 {v(48+c)}, {v(48+c)}")
for c in range(8): A(f"v_add_f32 {v(48+c)}, 1.0, {v(48+c)}")
for c in range(8): A(f"v_rcp_f32 {v(48+c)}, {v(48+c)}")
for c in range(8): A(f"v_mul_f32 {v(40+c)}, {v(40+c)}, {v(48+c)}")
for c in range(8): rnd(40+c)
A("s_waitcnt vmcnt(0)")
for rr in range(8):
    for d in range(4): unpack(48+2*d, 49+2*d, 92+4*rr+d)
    for c in range(8):
        if rr == 0: A(f"v_mul_f32 {v(64+2*c)}, {v(48+c)}, {v(40+rr)}")
        else: A(f"v_fmac_f32 {v(64+2*c)}, {v(48+c)}, {v(40+rr)}")
for c in range(8): A(f"v_mov_b32 {v(65+2*c)}, {sTAG}")
A(f"s_lshl_b32 s12, {sJJ}, 12")
A(f"s_add_u32 s12, s12, {BVEC}")
A(f"v_lshlrev_b32 v62, 6, {v(vLANE)}")
A("v_add_u32 v62, s12, v62")
A("s_mov_b32 exec_hi, 0x00ffffff")
for t in range(4):
    A(f"global_store_dwordx4 v62, {vr(64+4*t,4)}, {pWS} offset:{16*t} sc1")
A("s_mov_b64 exec, -1")
A("s_waitcnt vmcnt(0)")
A("s_branch L_kv")
LBL("L_gate")
C("gate: sigmoid(bf16(sum(bf16(x*gw))))")
for k in range(8): A(f"v_mov_b32 {v(16+k)}, 0")
A(f"v_lshlrev_b32 v62, 4, {v(vLANE)}")
A("s_mov_b32 exec_hi, 0x00ffffff")
A(f"global_load_dwordx4 v[16:19], v62, {pX}")
A(f"global_load_dwordx4 v[20:23], v62, {pGW}")
A("s_mov_b64 exec, -1")
A("s_barrier")
A("s_waitcnt vmcnt(0)")
for k in range(4):
    unpack(40, 41, 16+k); unpack(42, 43, 20+k)
    A("v_mul_f32 v40, v40, v42")
    A("v_mul_f32 v41, v41, v43")
    A("v_cvt_pk_bf16_f32 v40, v40, v41")
    unpack(42, 43, 40)
    if k == 0: A("v_add_f32 v44, v42, v43")
    else:
        A("v_add_f32 v44, v44, v42"); A("v_add_f32 v44, v44, v43")
row_allreduce("v_add_f32", [44])
xrow_allreduce("v_add_f32", [44], [45])
rnd(44)
A(f"v_mul_f32 v44, {f32(-math.log2(math.e))}, v44")
A("v_exp_f32 v44, v44")
A("s_nop 0")
A("v_add_f32 v44, 1.0, v44")
A("v_rcp_f32 v44, v44")
A("s_nop 0")
rnd(44)
A("v_mov_b32 v62, 0")
A("s_mov_b64 exec, 1")
A(f"ds_write_b32 v62, v44 offset:{GATE}")
A("s_mov_b64 exec, -1")
A("s_branch L_kv")

LBL("L_w2")
C("===== wave 2: 16 rows of wo (14336 B contiguous) straight into LDS =====")
srd(52, "s24", "s25", 4096*896)
A(f"s_lshl_b32 s12, {sHT}, 5")
A(f"s_add_u32 s12, s12, {sSL}")
A("s_mul_i32 s12, s12, 14336")
A(f"v_lshlrev_b32 v62, 4, {v(vLANE)}")
for k in range(14):
    if k % 4 == 0:
        A(f"s_mov_b32 m0, {WOBUF + 1024*k}")
        if k: A("s_add_u32 s12, s12, 4096")
        else: A("s_nop 0")
    A(f"buffer_load_dwordx4 v62, {srdT}, s12 offen offset:{1024*(k%4)} {SPOL} lds")

LBL("L_kv0")
A("s_barrier")
LBL("L_kv")
if OPT["PRIO"]: A("s_setprio 2")
issue_K(0); issue_V(0)
if OPT["ROT"]: A(f"v_add_u32 {v(vKV)}, s91, {v(vLP)}")
else: A(f"v_add_u32 {v(vKV)}, 0x200000, {v(vKV)}")
issue_K(1); issue_V(1)
if OPT["PRIO"]: A("s_setprio 0")
stamp(7)
C("diag masks")
A(f"v_and_b32 {v(vT0)}, 1, {v(vLANE)}")
A(f"v_lshlrev_b32 {v(vT0)}, 4, {v(vT0)}")
A(f"v_mov_b32 {v(vT1)}, 0xffff")
A(f"v_lshlrev_b32 {v(vT1)}, {v(vT0)}, {v(vT1)}")
A(f"v_bfe_u32 {v(vT0)}, {v(vLANE)}, 1, 2")
for k in range(4):
    A(f"v_cmp_eq_u32 vcc, {k}, {v(vT0)}")
    A("s_nop 1")
    A(f"v_cndmask_b32 {v(MASK+k)}, 0, {v(vT1)}, vcc")
A(f"s_mov_b32 {sC}, {f32(0.0625*math.log2(math.e))}")
for k in range(8): A(f"v_mov_b32 {v(ACC+k)}, 0")
A(f"v_mov_b32 {v(vMR)}, 0xff800000")
A(f"v_mov_b32 {v(vMC)}, 0xff800000")
A(f"v_mov_b32 {v(vL)}, 0")
A(f"s_lshl_b32 s12, {sSEL}, 4")
A(f"v_mov_b32 {v(vZ)}, s12")
A(f"v_mov_b32 {v(vONE)}, 1")
A(f"s_mov_b32 {sPEND}, 0")
if OPT["NJ"]: A(f"s_mov_b32 s92, {NACT}")
tagcalc()
C("wait for q (LDS flag, cleared before the start barrier)")
A("s_mov_b32 s12, 4000000")
LBL("L_qwait")
A(f"ds_read_b32 {v(vT0)}, {v(vZ)} offset:{QFLAG}")
A("s_waitcnt lgkmcnt(0)")
A(f"v_readfirstlane_b32 s13, {v(vT0)}")
A("s_cmp_eq_u32 s13, 1")
A("s_cbranch_scc1 L_qready")
A("s_sleep 1")
A("s_sub_u32 s12, s12, 1")
A("s_cmp_lg_u32 s12, 0")
A("s_cbranch_scc1 L_qwait")
LBL("L_qready")
A(f"ds_read_b32 {v(vT0)}, {v(vZ)} offset:{CBASE}")
A(f"v_lshlrev_b32 {v(vT1)}, 4, {v(vN)}")
A(f"v_lshl_add_u32 {v(vT1)}, {v(vZ)}, 6, {v(vT1)}")
for h in range(2):
    for hf in range(2):
        A(f"ds_read_b128 {vr(Q+8*h+4*hf,4)}, {v(vT1)} offset:{QBF+512*h+256*hf}")
A("s_waitcnt lgkmcnt(0)")
A(f"v_readfirstlane_b32 {sCB}, {v(vT0)}")
stamp(1)

def draw(tag):
    A("s_mov_b64 exec, 1")
    A(f"ds_add_rtn_u32 {v(vTK)}, {v(vZ)}, {v(vONE)} offset:{TKT}")
    A("s_mov_b64 exec, -1")
    LBL(f"L_chk{tag}")
    A("s_waitcnt lgkmcnt(0)")
    A(f"v_readfirstlane_b32 s14, {v(vTK)}")
    A("s_and_b32 s13, s14, 0xfff")
    A("s_bfe_u32 s6, s14, 0x7000c")
    A("s_lshr_b32 s12, s14, 19")
    A(f"s_lshl_b32 s6, s6, {LCW}")
    A("s_cmp_ge_u32 s13, s6")
    A(f"s_cbranch_scc1 L_slow{tag}")
    LBL(f"L_ok{tag}")
    A(f"s_lshr_b32 s6, s13, {LCW}")
    A(f"s_lshl_b32 s6, s6, {LROW}")
    A(f"s_and_b32 s13, s13, {CW-1}")
    A("s_add_u32 s12, s12, s13")
    A("s_add_u32 s12, s12, s6")
    if OPT["ROT"]:
        A(f"s_add_u32 s12, s12, {sROT}")
        A("s_and_b32 s12, s12, 8191")
    A("s_lshl_b32 s12, s12, 12")
    A(f"v_add_u32 {v(vKV)}, s12, {v(vLP)}")
def pend(tag):
    A(f"s_cmp_eq_u32 {sPEND}, 0")
    A(f"s_cbranch_scc1 L_nopend{tag}")
    C("the piece fetched from the head's global counter becomes NEXT")
    A("s_waitcnt lgkmcnt(0)")
    A(f"s_sub_u32 {sFET}, {sFET}, {sCB}")
    A(f"s_min_u32 {sFET}, {sFET}, 0x4000")
    A(f"s_lshr_b32 s12, {sFET}, {5+LHP}")
    A(f"s_mul_i32 s12, s12, {MD*ROW}")
    A(f"s_and_b32 s13, {sFET}, {NP-1}")
    A(f"s_lshl_b32 s13, s13, {LCW}")
    A("s_add_u32 s12, s12, s13")
    A(f"s_add_u32 s12, s12, {RSr*ROW}")
    A("s_lshl_b32 s13, s12, 19")
    A(f"s_or_b32 s13, s13, {MD<<12}")
    A("s_cmp_ge_u32 s12, 8192")
    A(f"s_cselect_b32 {sFET}, 0xfff80001, s13")
    A(f"v_mov_b32 {v(vT0)}, {sFET}")
    A(f"ds_write_b32 {v(vZ)}, {v(vT0)} offset:{NEXT}")
    A(f"s_mov_b32 {sPEND}, 0")
    LBL(f"L_nopend{tag}")
sACT = "s92"
def tile(st, tag, drain=False):
    K = STG + 32*st
    V = K + 16
    if not drain:
        if NACT < 16:
            A(f"s_cmp_ge_u32 {sWAVE}, {sACT if OPT['NJ'] else NACT}")
            A(f"s_cbranch_scc1 L_drain{tag}")
        draw(tag)
    A("s_waitcnt vmcnt(%d)" % (0 if drain else 12))
    for hf in range(2):
        for k in range(4):
            for grp in range(2):
                for h in range(2):
                    d = D + 2*grp + h
                    src2 = "0" if (hf == 0 and k == 0) else v(d)
                    A(f"v_dot2_f32_bf16 {v(d)}, {v(K+8*grp+4*hf+k)}, {v(Q+8*h+4*hf+k)}, {src2}")
    if not drain: issue_K(st)
    else: A("s_nop 2")
    A(f"v_add_f32_dpp {v(vTA)}, {v(D+0)}, {v(D+0)} row_ror:8 row_mask:0xf bank_mask:0x3")
    A(f"v_add_f32_dpp {v(vTB)}, {v(D+2)}, {v(D+2)} row_ror:8 row_mask:0xf bank_mask:0x3")
    A(f"v_add_f32_dpp {v(vTA)}, {v(D+1)}, {v(D+1)} row_ror:8 row_mask:0xf bank_mask:0xc")
    A(f"v_add_f32_dpp {v(vTB)}, {v(D+3)}, {v(D+3)} row_ror:8 row_mask:0xf bank_mask:0xc")
    for pat in ["row_half_mirror", "quad_perm:[1,0,3,2]", "quad_perm:[2,3,0,1]"]:
        A("s_nop 0")
        A(f"v_add_f32_dpp {v(vTA)}, {v(vTA)}, {v(vTA)} {pat} {DPPALL}")
        A(f"v_add_f32_dpp {v(vTB)}, {v(vTB)}, {v(vTB)} {pat} {DPPALL}")
    A(f"v_cvt_pk_bf16_f32 {v(vPK)}, {v(vTA)}, {v(vTB)}")
    A(f"v_lshlrev_b32 {v(vSA)}, 16, {v(vPK)}")
    A(f"v_and_b32 {v(vSB)}, 0xffff0000, {v(vPK)}")
    A(f"v_max_f32 {v(vTM)}, {v(vSA)}, {v(vSB)}")
    A(f"v_cmp_gt_f32 vcc, {v(vTM)}, {v(vMR)}")
    A(f"s_cbranch_vccz L_nomax{tag}")
    C("new running max: rescale")
    A(f"v_max_f32 {v(vTM)}, {v(vTM)}, {v(vMR)}")
    xrow_allreduce("v_max_f32", [vTM], [vT0])
    A(f"v_sub_f32 {v(vT1)}, {v(vMR)}, {v(vTM)}")
    A(f"v_mul_f32 {v(vT1)}, {sC}, {v(vT1)}")
    A(f"v_exp_f32 {v(vT1)}, {v(vT1)}")
    A(f"v_mov_b32 {v(vMR)}, {v(vTM)}")
    A(f"v_mul_f32 {v(vMC)}, {sC}, {v(vTM)}")
    A(f"v_mul_f32 {v(vL)}, {v(vL)}, {v(vT1)}")
    A(f"v_mov_b32 {v(vT2)}, {v(vT1)}")
    A("s_nop 1")
    A(f"v_mov_b32_dpp {v(vT2)}, {v(vT1)} row_ror:8 row_mask:0x3 bank_mask:0xc")
    A(f"v_mov_b32_dpp {v(vT2)}, {v(vT1)} row_ror:8 row_mask:0xc bank_mask:0x3")
    for k in range(8): A(f"v_mul_f32 {v(ACC+k)}, {v(ACC+k)}, {v(vT2)}")
    LBL(f"L_nomax{tag}")
    A(f"v_fma_f32 {v(vPA)}, {v(vSA)}, {sC}, -{v(vMC)}")
    A(f"v_fma_f32 {v(vPB)}, {v(vSB)}, {sC}, -{v(vMC)}")
    A(f"v_exp_f32 {v(vPA)}, {v(vPA)}")
    A(f"v_exp_f32 {v(vPB)}, {v(vPB)}")
    A("s_nop 0")
    A(f"v_cvt_pk_bf16_f32 {v(vT0)}, {v(vPA)}, {v(vPA)}")
    A(f"v_cvt_pk_bf16_f32 {v(vT1)}, {v(vPB)}, {v(vPB)}")
    for d in range(4): A(f"v_and_b32 {v(AOP+d)}, {v(vT0)}, {v(MASK+d)}")
    for d in range(4): A(f"v_and_b32 {v(AOP+4+d)}, {v(vT1)}, {v(MASK+d)}")
    A(f"v_add_f32 {v(vL)}, {v(vL)}, {v(vPA)}")
    A(f"v_add_f32 {v(vL)}, {v(vL)}, {v(vPB)}")
    A("s_waitcnt vmcnt(12)" if not drain else "s_nop 0")
    A(f"v_mfma_f32_16x16x32_bf16 {vr(ACC,4)}, {vr(AOP,4)}, {vr(V,4)}, {vr(ACC,4)}")
    A(f"v_mfma_f32_16x16x32_bf16 {vr(ACC+4,4)}, {vr(AOP,4)}, {vr(V+4,4)}, {vr(ACC+4,4)}")
    A(f"v_mfma_f32_16x16x32_bf16 {vr(ACC,4)}, {vr(AOP+4,4)}, {vr(V+8,4)}, {vr(ACC,4)}")
    A(f"v_mfma_f32_16x16x32_bf16 {vr(ACC+4,4)}, {vr(AOP+4,4)}, {vr(V+12,4)}, {vr(ACC+4,4)}")
    if drain: return
    issue_V(st)
    pend(tag)

def slow(tag):
    LBL(f"L_slow{tag}")
    A("s_cmp_eq_u32 s12, 0x1fff")
    A(f"s_cbranch_scc1 L_drain{tag}")
    A("s_cmp_eq_u32 s13, s6")
    A(f"s_cbranch_scc1 L_inst{tag}")
    C("chunk exhausted, another wave installs the next one: watch the word, then draw again")
    A("s_lshr_b32 s7, s14, 12")
    A("s_mov_b32 s13, 4000000")
    LBL(f"L_retry{tag}")
    A("s_sleep 1")
    A(f"ds_read_b32 {v(vT0)}, {v(vZ)} offset:{TKT}")
    A("s_waitcnt lgkmcnt(0)")
    A(f"v_readfirstlane_b32 s12, {v(vT0)}")
    A("s_lshr_b32 s12, s12, 12")
    A("s_cmp_lg_u32 s12, s7")
    A(f"s_cbranch_scc1 L_redraw{tag}")
    A("s_sub_u32 s13, s13, 1")
    A("s_cmp_lg_u32 s13, 0")
    A(f"s_cbranch_scc1 L_retry{tag}")
    A(f"s_branch L_drain{tag}")
    LBL(f"L_redraw{tag}")
    A("s_mov_b64 exec, 1")
    A(f"ds_add_rtn_u32 {v(vTK)}, {v(vZ)}, {v(vONE)} offset:{TKT}")
    A("s_mov_b64 exec, -1")
    A(f"s_branch L_chk{tag}")
    LBL(f"L_inst{tag}")
    A("s_mov_b32 s13, 4000000")
    LBL(f"L_instw{tag}")
    A(f"ds_read_b32 {v(vT0)}, {v(vZ)} offset:{NEXT}")
    A("s_waitcnt lgkmcnt(0)")
    A(f"v_readfirstlane_b32 s12, {v(vT0)}")
    A("s_cmp_lg_u32 s12, -1")
    A(f"s_cbranch_scc1 L_instg{tag}")
    A("s_sleep 1")
    A("s_sub_u32 s13, s13, 1")
    A("s_cmp_lg_u32 s13, 0")
    A(f"s_cbranch_scc1 L_instw{tag}")
    A("s_mov_b32 s12, 0xfff80001")
    LBL(f"L_instg{tag}")
    A("s_cmp_eq_u32 s12, 0xfff80001")
    A(f"s_cbranch_scc0 L_instv{tag}")
    A(f"v_mov_b32 {v(vT0)}, s12")
    A(f"ds_write_b32 {v(vZ)}, {v(vT0)} offset:{TKT}")
    A(f"s_branch L_drain{tag}")
    LBL(f"L_instv{tag}")
    C("valid chunk s12 (packed): install it (this wave takes slot 0), fetch the one after it")
    A(f"v_mov_b32 {v(vT1)}, -1")
    A(f"s_mov_b32 {sFET}, 1")
    A(f"s_atomic_add {sFET}, {pWS}, {sCOFF} glc")
    A(f"s_mov_b32 {sPEND}, 1")
    A(f"ds_write_b32 {v(vZ)}, {v(vT1)} offset:{NEXT}")
    A("s_or_b32 s13, s12, 1")
    A(f"v_mov_b32 {v(vT0)}, s13")
    A(f"ds_write_b32 {v(vZ)}, {v(vT0)} offset:{TKT}")
    A("s_lshr_b32 s12, s12, 19")
    A("s_mov_b32 s13, 0")
    A(f"s_branch L_ok{tag}")

LBL("L_loop")
tile(0, "0")
tile(1, "1")
A("s_branch L_loop")
slow("0")
slow("1")
if OPT["NJ"]:
    slow("j0")
    slow("j1")
LBL("L_drain1")
tile(1, "d1", drain=True)
LBL("L_drainj1")
tile(0, "d1b", drain=True)
A("s_branch L_drained")
LBL("L_drain0")
tile(0, "d0", drain=True)
tile(1, "d0b", drain=True)
LBL("L_drained")
if OPT["NJ"]:
    C("late joiners: waves NACT..NACT+NJ-1 come back for the last rounds of their head")
    A(f"s_cmp_lt_u32 {sWAVE}, {sACT}")
    A("s_cbranch_scc1 L_loopend")
    A(f"s_cmp_ge_u32 {sWAVE}, {NACT+OPT['NJ']}")
    A("s_cbranch_scc1 L_loopend")
    A(f"s_mov_b32 {sACT}, 16")
    A("s_mov_b32 s13, 2000000")
    LBL("L_jwait")
    A("s_sleep 8")
    A(f"ds_read_b32 {v(vT0)}, {v(vZ)} offset:{TKT}")
    A("s_waitcnt lgkmcnt(0)")
    A(f"v_readfirstlane_b32 s12, {v(vT0)}")
    A("s_lshr_b32 s12, s12, 19")
    A(f"s_cmp_ge_u32 s12, {OPT['JR']*NR//64*ROW}")
    A("s_cbranch_scc1 L_jgo")
    A("s_sub_u32 s13, s13, 1")
    A("s_cmp_lg_u32 s13, 0")
    A("s_cbranch_scc1 L_jwait")
    A("s_branch L_loopend")
    LBL("L_jgo")
    draw("j0")
    issue_K(0); issue_V(0)
    pend("j0")
    draw("j1")
    issue_K(1); issue_V(1)
    pend("j1")
    A("s_branch L_loop")
    LBL("L_drainj0")
LBL("L_loopend")
stamp(2)
if OPT["NOTAIL"] == 1: A("s_endpgm")

C("===== T1: combine the waves of this workgroup, per head =====")
xrow_allreduce("v_add_f32", [vL], [vT0])
C("O -> LDS : OBUF + wave*2048 + ((l>>5)*256 + 8n + 4*((l>>4)&1))*4")
A(f"v_lshrrev_b32 {v(vT1)}, 5, {v(vLANE)}")
A(f"v_lshlrev_b32 {v(vT1)}, 10, {v(vT1)}")
A(f"v_lshl_add_u32 {v(vT1)}, {v(vN)}, 5, {v(vT1)}")
A(f"v_and_b32 {v(vT2)}, 1, {v(vG)}")
A(f"v_lshl_add_u32 {v(vT1)}, {v(vT2)}, 4, {v(vT1)}")
A(f"s_lshl_b32 s12, {sWAVE}, 11")
A(f"v_add_u32 {v(vT1)}, s12, {v(vT1)}")
A(f"ds_write_b128 {v(vT1)}, {vr(ACC,4)} offset:{OBUF}")
A(f"ds_write_b128 {v(vT1)}, {vr(ACC+4,4)} offset:{OBUF+512}")
C("(Mc,l) from lanes 0 and 8: ML + ((sel*2+qh)*WPH + wl)*8")
A(f"v_mul_u32_u24 {v(vT1)}, {WPH}, {v(vLANE)}")
A(f"s_lshr_b32 s12, {sWAVE}, {LHP}")
A(f"s_mul_i32 s13, {sSEL}, {2*WPH}")
A("s_add_u32 s12, s12, s13")
A("s_lshl_b32 s12, s12, 3")
A(f"v_add_u32 {v(vT1)}, s12, {v(vT1)}")
A("s_mov_b64 exec, 0x101")
A(f"ds_write_b64 {v(vT1)}, {vr(vMC,2)} offset:{ML}")
A("s_mov_b64 exec, -1")
PMERGE = OPT["PM"] and HP == 1 and not OPT["NJ"] and NACT <= 8
if PMERGE:
    C("the waves that stopped early are merged into slot NACT by the last of them (long before the stream ends)")
    A(f"s_cmp_lt_u32 {sWAVE}, {NACT}")
    A("s_cbranch_scc1 L_nomerge")
    A("v_mov_b32 v62, 0")
    A("s_waitcnt lgkmcnt(0)")
    A("s_mov_b64 exec, 1")
    A(f"ds_add_rtn_u32 v60, v62, {v(vONE)} offset:{MCNT}")
    A("s_mov_b64 exec, -1")
    A("s_waitcnt lgkmcnt(0)")
    A("v_readfirstlane_b32 s12, v60")
    A(f"s_cmp_lg_u32 s12, {15-NACT}")
    A("s_cbranch_scc1 L_nomerge")
    NI = 16 - NACT
    A(f"v_lshrrev_b32 v60, 5, {v(vLANE)}")
    A("v_lshlrev_b32 v60, 7, v60")
    A(f"v_lshlrev_b32 v62, 5, {v(vLANE)}")
    for k in range(8):
        A(f"ds_read_b128 {vr(16+4*k,4)}, v60 offset:{ML+16*k}")
    A("s_waitcnt lgkmcnt(0)")
    ms = [16+2*k for k in range(NACT, 16)]
    A(f"v_mov_b32 v48, {v(ms[0])}")
    for m_ in ms[1:]: A(f"v_max_f32 v48, v48, {v(m_)}")
    for m_ in ms: A(f"v_sub_f32 {v(m_)}, {v(m_)}, v48")
    for m_ in ms: A(f"v_exp_f32 {v(m_)}, {v(m_)}")
    A("s_nop 0")
    A(f"v_mul_f32 v49, {v(ms[0])}, {v(ms[0]+1)}")
    for m_ in ms[1:]: A(f"v_fmac_f32 v49, {v(m_)}, {v(m_+1)}")
    for half in range(2):
        grp = list(range(NACT, 16))
        for k, w in enumerate(grp):
            A(f"ds_read_b128 {vr(64+4*k,4)}, v62 offset:{OBUF+2048*w+16*half}")
        A("s_waitcnt lgkmcnt(0)")
        for k, w in enumerate(grp):
            for r in range(4):
                if k == 0: A(f"v_mul_f32 {v(52+4*half+r)}, {v(16+2*w)}, {v(64+4*k+r)}")
                else: A(f"v_fmac_f32 {v(52+4*half+r)}, {v(16+2*w)}, {v(64+4*k+r)}")
    A(f"ds_write_b128 v62, v[52:55] offset:{OBUF+2048*NACT}")
    A(f"ds_write_b128 v62, v[56:59] offset:{OBUF+2048*NACT+16}")
    A("s_mov_b32 exec_lo, 1")
    A("s_mov_b32 exec_hi, 1")
    A(f"ds_write_b64 v60, v[48:49] offset:{ML+8*NACT}")
    A("s_mov_b64 exec, -1")
    LBL("L_nomerge")
C("addresses for the combine (thread t: sel = t>>9, qh = (t>>8)&1, dim = t&255)")
A(f"s_lshr_b32 s7, {sWAVE}, 3")
A(f"s_mul_i32 s12, s7, {NG}")
A(f"s_add_u32 s12, s12, {sPG}")
A(f"s_lshl_b32 s12, s12, {5+LHP}")
A(f"s_add_u32 s12, s12, {sJ}")
A("s_lshl_b32 s12, s12, 13")
A("s_add_u32 s60, s42, s12"); A("s_addc_u32 s61, s43, 0")
A("v_lshrrev_b32 v60, 8, v0")
A(f"v_mul_u32_u24 v60, {WPH*8}, v60")
A("v_and_b32 v63, 511, v0")
A("s_lshl_b32 s13, s7, 11")
A("v_lshlrev_b32 v62, 2, v63")
A("v_add_u32 v62, s13, v62")
A(f"v_mov_b32 v45, {sTAG}"); A(f"v_mov_b32 v41, {sTAG}"); A(f"v_mov_b32 v43, {sTAG}")
A("s_waitcnt vmcnt(0) lgkmcnt(0)")
A("s_barrier")
if HP == 1:
    A(f"s_cmp_ge_u32 {sWAVE}, 8")
    A("s_cbranch_scc1 L_t3_check")
NS = NACT + 1 if PMERGE else WPH
for k in range((NS+1)//2):
    A(f"ds_read_b128 {vr(64+4*k,4)}, v60 offset:{ML+16*k}")
for k in range(NS):
    A(f"ds_read_b32 {v(96+k)}, v62 offset:{OBUF+2048*HP*k}")
A("v_lshlrev_b32 v62, 3, v63")
A(f"s_waitcnt lgkmcnt({min(15,NS)})")
A("v_max3_f32 v40, v64, v66, v68")
k = 3
while k < NS:
    if k+1 < NS: A(f"v_max3_f32 v40, v40, {v(64+2*k)}, {v(66+2*k)}"); k += 2
    else: A(f"v_max_f32 v40, v40, {v(64+2*k)}"); k += 1
for k in range(NS): A(f"v_sub_f32 {v(64+2*k)}, {v(64+2*k)}, v40")
for k in range(NS): A(f"v_exp_f32 {v(64+2*k)}, {v(64+2*k)}")
A("s_waitcnt lgkmcnt(0)")
A("v_mul_f32 v44, v64, v96")
for k in range(1, NS): A(f"v_fmac_f32 v44, {v(64+2*k)}, {v(96+k)}")
if OPT["W16"]:
    A(f"v_mov_b32 v47, {sTAG}")
    A("s_nop 0")
    A(f"v_mov_b32_dpp v46, v44 quad_perm:[1,1,3,3] {DPPALL}")
    A("s_mov_b32 exec_lo, 0x55555555")
    A("s_mov_b32 exec_hi, 0x55555555")
    A("global_store_dwordx4 v62, v[44:47], s[60:61] sc1")
    A("s_mov_b64 exec, -1")
else:
    A("global_store_dwordx2 v62, v[44:45], s[60:61] sc1")
A("v_mul_f32 v42, v64, v65")
for k in range(1, NS): A(f"v_fmac_f32 v42, {v(64+2*k)}, {v(65+2*k)}")
A("v_and_b32 v62, 255, v0")
A("v_lshrrev_b32 v60, 4, v63")
A("v_add_u32 v60, 0x1000, v60")
A("v_cmp_eq_u32 vcc, 0, v62")
A("s_and_saveexec_b64 s[62:63], vcc")
A("s_cbranch_execz L_t1_noml")
A("global_store_dwordx4 v60, v[40:43], s[60:61] sc1")
LBL("L_t1_noml")
A("s_mov_b64 exec, s[62:63]")
if OPT["NOTAIL"] == 2: A("s_endpgm")
A(f"s_cmp_lg_u32 {sWAVE}, 0")
A("s_cbranch_scc1 L_t3_check")

NK = 8*HP
C("===== T2 (wave 0): combine the head's partials for 16 o-dims, out-projection =====")
A(f"v_mul_u32_u24 v60, 896, {v(vG)}")
A(f"v_lshl_add_u32 v60, {v(vN)}, 4, v60")
for jj in range(4):
    for cb in range(4):
        A(f"ds_read_b128 {vr(64+16*jj+4*cb,4)}, v60 offset:{WOBUF+jj*3584+cb*256}")
if not OPT["W16"]:
    C("O granules: slot (hT*NP + sq*NK + k), offset (16 sl + d)*8")
    A(f"v_lshlrev_b32 v60, {13+3+LHP}, {v(vG)}")
    A(f"v_lshl_add_u32 v60, {v(vN)}, 3, v60")
    A(f"s_lshl_b32 s13, {sHT}, {13+5+LHP}")
    A(f"s_lshl_b32 s14, {sSL}, 7")
    A("s_add_u32 s14, s13, s14")
    A("v_add_u32 v60, s14, v60")
    A(f"v_and_b32 v62, {NP-1}, {v(vLANE)}")
    A("v_lshlrev_b32 v62, 13, v62")
    A(f"s_lshr_b32 s14, {sSL}, 4")
    A("s_lshl_b32 s14, s14, 4")
    A("s_add_u32 s13, s13, s14")
    A("s_add_u32 s13, s13, 0x1000")
    A("v_add_u32 v62, s13, v62")
    OR_, MLR = 16, 48
    loads = ["s_mov_b32 s13, 0"]
    for k in range(NK):
        loads.append(f"buffer_load_dwordx2 {vr(OR_+2*k,2)}, v60, {srdWS}, s13 offen sc1")
        if k < NK-1: loads.append("s_add_u32 s13, s13, 8192")
    loads.append(f"buffer_load_dwordx4 {vr(MLR,4)}, v62, {srdWS}, 0 offen sc1")
    poll("t2", loads, [OR_+1+2*k for k in range(NK)] + [MLR+1, MLR+3])
    stamp(3)
    sw = (16,) if HP == 1 else (32, 16)
    A(f"v_mov_b32 v52, {v(MLR)}")
    row_allreduce("v_max_f32", [52])
    xrow_allreduce("v_max_f32", [52], [53], which=sw)
    A(f"v_sub_f32 {v(MLR)}, {v(MLR)}, v52")
    A(f"v_exp_f32 {v(MLR)}, {v(MLR)}")
    A("s_nop 0")
    A(f"v_mul_f32 {v(MLR+2)}, {v(MLR+2)}, {v(MLR)}")
    row_allreduce("v_add_f32", [MLR+2])
    xrow_allreduce("v_add_f32", [MLR+2], [53], which=sw)
    A(f"v_rcp_f32 {v(MLR+2)}, {v(MLR+2)}")
    A(f"v_lshlrev_b32 v62, 2, {v(vLANE)}")
    A(f"v_mul_f32 {v(MLR)}, {v(MLR)}, {v(MLR+2)}")
    if HP == 1: A("s_mov_b32 exec_hi, 0")
    A(f"ds_write_b32 v62, {v(MLR)} offset:{WGT}")
    if HP == 1: A("s_mov_b64 exec, -1")
    A(f"v_lshlrev_b32 v62, {5+LHP}, {v(vG)}")
    A("s_waitcnt lgkmcnt(0)")
    WR = [8, 12, 52, 56]
    for q4 in range(NK//4):
        A(f"ds_read_b128 {vr(WR[q4],4)}, v62 offset:{WGT+16*q4}")
    A("s_waitcnt lgkmcnt(0)")
    A(f"v_mul_f32 v60, v8, {v(OR_)}")
    for k in range(1, NK): A(f"v_fmac_f32 v60, {v(WR[k//4]+k%4)}, {v(OR_+2*k)}")
    xrow_allreduce("v_add_f32", [60], [61])
    A("v_cvt_pk_bf16_f32 v60, v60, v60")
    A(f"v_lshlrev_b32 v62, 2, {v(vG)}")
    for jj in range(4):
        A(f"v_add_u32 v61, {16*jj}, v62")
        A(f"ds_bpermute_b32 {v(40+jj)}, v61, v60")
    A("s_waitcnt lgkmcnt(0)")
else:
    NK4 = 4*HP
    C("O granule pairs: lane (d2 = l&7, sg = l>>3): slots hT*NP + sg*NK4 + k, offset (16 sl + 2 d2)*8")
    A(f"v_lshrrev_b32 v61, 3, {v(vLANE)}")
    A(f"v_lshlrev_b32 v60, {13+2+LHP}, v61")
    A(f"v_and_b32 v63, 7, {v(vLANE)}")
    A("v_lshl_add_u32 v60, v63, 4, v60")
    A(f"s_lshl_b32 s13, {sHT}, {13+5+LHP}")
    A(f"s_lshl_b32 s14, {sSL}, 7")
    A("s_add_u32 s14, s13, s14")
    A("v_add_u32 v60, s14, v60")
    if not (OPT["T2F"] and HP == 1):
        A(f"v_and_b32 v62, {NP-1}, {v(vLANE)}")
        A("v_lshlrev_b32 v62, 13, v62")
        A(f"s_lshr_b32 s14, {sSL}, 4")
        A("s_lshl_b32 s14, s14, 4")
        A("s_add_u32 s13, s13, s14")
        A("s_add_u32 s13, s13, 0x1000")
        A("v_add_u32 v62, s13, v62")
        C("selector: replicate low (g even) or high (g odd) half")
        A(f"v_and_b32 v63, 1, {v(vG)}")
        A("v_mul_u32_u24 v63, 0x0202, v63")
        A("v_lshl_or_b32 v63, v63, 16, v63")
        A("v_add_u32 v63, 0x01000100, v63")
        OR_, MLR = 16, 48
        loads = ["s_mov_b32 s13, 0"]
        for k in range(NK4):
            loads.append(f"buffer_load_dwordx4 {vr(OR_+4*k,4)}, v60, {srdWS}, s13 offen sc1")
            if k < NK4-1: loads.append("s_add_u32 s13, s13, 8192")
        loads.append(f"buffer_load_dwordx4 {vr(MLR,4)}, v62, {srdWS}, 0 offen sc1")
        poll("t2", loads, [OR_+1+2*k for k in range(2*NK4)] + [MLR+1, MLR+3])
        stamp(3)
        sw = (16,) if HP == 1 else (32, 16)
        A(f"v_mov_b32 v52, {v(MLR)}")
        row_allreduce("v_max_f32", [52])
        xrow_allreduce("v_max_f32", [52], [53], which=sw)
        A(f"v_sub_f32 {v(MLR)}, {v(MLR)}, v52")
        A(f"v_exp_f32 {v(MLR)}, {v(MLR)}")
        A("s_nop 0")
        A(f"v_mul_f32 {v(MLR+2)}, {v(MLR+2)}, {v(MLR)}")
        row_allreduce("v_add_f32", [MLR+2])
        xrow_allreduce("v_add_f32", [MLR+2], [53], which=sw)
        A(f"v_rcp_f32 {v(MLR+2)}, {v(MLR+2)}")
        A(f"v_lshlrev_b32 v62, 2, {v(vLANE)}")
        A(f"v_mul_f32 {v(MLR)}, {v(MLR)}, {v(MLR+2)}")
        if HP == 1: A("s_mov_b32 exec_hi, 0")
        A(f"ds_write_b32 v62, {v(MLR)} offset:{WGT}")
        if HP == 1: A("s_mov_b64 exec, -1")
        A(f"v_lshlrev_b32 v62, {4+LHP}, v61")
        A("s_waitcnt lgkmcnt(0)")
        for q4 in range(NK4//4):
            A(f"ds_read_b128 {vr(8+4*q4,4)}, v62 offset:{WGT+16*q4}")
        A("s_waitcnt lgkmcnt(0)")
        A(f"v_mul_f32 v52, v8, {v(OR_)}")
        A(f"v_mul_f32 v53, v8, {v(OR_+2)}")
        for k in range(1, NK4):
            A(f"v_fmac_f32 v52, {v(8+k)}, {v(OR_+4*k)}")
            A(f"v_fmac_f32 v53, {v(8+k)}, {v(OR_+4*k+2)}")
        A("s_nop 0")
        A(f"v_add_f32_dpp v52, v52, v52 row_ror:8 {DPPALL}")
        A(f"v_add_f32_dpp v53, v53, v53 row_ror:8 {DPPALL}")
        xrow_allreduce("v_add_f32", [52, 53], [54, 55])
    else:
        C("each lane also reads (M,L) of its own 4 producers")
        A("v_lshlrev_b32 v62, 15, v61")
        A(f"s_lshr_b32 s14, {sSL}, 4")
        A("s_lshl_b32 s14, s14, 4")
        A("s_add_u32 s13, s13, s14")
        A("s_add_u32 s13, s13, 0x1000")
        A("v_add_u32 v62, s13, v62")
        A(f"v_and_b32 v63, 1, {v(vG)}")
        A("v_mul_u32_u24 v63, 0x0202, v63")
        A("v_lshl_or_b32 v63, v63, 16, v63")
        A("v_add_u32 v63, 0x01000100, v63")
        OR_, MLR = 16, 32
        loads = ["s_mov_b32 s13, 0"]
        for k in range(4):
            loads.append(f"buffer_load_dwordx4 {vr(OR_+4*k,4)}, v60, {srdWS}, s13 offen sc1")
            loads.append(f"buffer_load_dwordx4 {vr(MLR+4*k,4)}, v62, {srdWS}, s13 offen sc1")
            if k < 3: loads.append("s_add_u32 s13, s13, 8192")
        poll("t2", loads, [OR_+1+2*k for k in range(16)])
        stamp(3)
        A(f"v_max3_f32 v52, {v(MLR)}, {v(MLR+4)}, {v(MLR+8)}")
        A(f"v_max_f32 v52, v52, {v(MLR+12)}")
        A("s_nop 1")
        A(f"v_max_f32_dpp v52, v52, v52 row_ror:8 {DPPALL}")
        xrow_allreduce("v_max_f32", [52], [53])
        for k in range(4): A(f"v_sub_f32 {v(MLR+4*k)}, {v(MLR+4*k)}, v52")
        for k in range(4): A(f"v_exp_f32 {v(MLR+4*k)}, {v(MLR+4*k)}")
        A(f"v_mul_f32 v52, {v(MLR)}, {v(OR_)}")
        A(f"v_mul_f32 v53, {v(MLR)}, {v(OR_+2)}")
        A(f"v_mul_f32 v54, {v(MLR)}, {v(MLR+2)}")
        for k in range(1, 4):
            A(f"v_fmac_f32 v52, {v(MLR+4*k)}, {v(OR_+4*k)}")
            A(f"v_fmac_f32 v53, {v(MLR+4*k)}, {v(OR_+4*k+2)}")
            A(f"v_fmac_f32 v54, {v(MLR+4*k)}, {v(MLR+4*k+2)}")
        for r in (52, 53, 54): A(f"v_add_f32_dpp {v(r)}, {v(r)}, {v(r)} row_ror:8 {DPPALL}")
        xrow_allreduce("v_add_f32", [52, 53, 54], [55, 56, 57])
        A("v_rcp_f32 v54, v54")
        A("s_nop 0")
        A("v_mul_f32 v52, v52, v54")
        A("v_mul_f32 v53, v53, v54")
    A("v_cvt_pk_bf16_f32 v60, v52, v53")
    A(f"v_lshrrev_b32 v62, 1, {v(vG)}")
    A("v_lshlrev_b32 v62, 2, v62")
    for jj in range(4):
        A(f"v_add_u32 v61, {8*jj}, v62")
        A(f"ds_bpermute_b32 {v(40+jj)}, v61, v60")
    A("s_waitcnt lgkmcnt(0)")
    for jj in range(4):
        A(f"v_perm_b32 {v(40+jj)}, {v(40+jj)}, {v(40+jj)}, v63")
for jj in range(4):
    for d in range(4):
        A(f"v_and_b32 {v(44+4*jj+d)}, {v(40+jj)}, {v(MASK+d)}")
A("s_nop 1")
for jj in range(4):
    for cb in range(4):
        src = "0" if jj == 0 else vr(8+4*cb, 4)
        A(f"v_mfma_f32_16x16x32_bf16 {vr(8+4*cb,4)}, {vr(44+4*jj,4)}, {vr(64+16*jj+4*cb,4)}, {src}")
C("a-vector store address: AVEC + wg*4096 + (8n+4G)*8 + cb*1024")
A(f"v_lshlrev_b32 v62, 6, {v(vN)}")
A(f"v_lshl_add_u32 v62, {v(vG)}, 5, v62")
A("s_lshl_b32 s13, s2, 12")
A(f"s_add_u32 s13, s13, {AVEC}")
A("v_add_u32 v62, s13, v62")
for t in range(8):
    A(f"v_mov_b32 {v(25+4*t)}, {sTAG}")
    A(f"v_mov_b32 {v(27+4*t)}, {sTAG}")
A("s_nop 3")
for cb in range(4):
    for hfp in range(2):
        t = 2*cb + hfp
        A(f"v_mov_b32 {v(24+4*t)}, {v(8+4*cb+2*hfp)}")
        A(f"v_mov_b32 {v(26+4*t)}, {v(8+4*cb+2*hfp+1)}")
A("s_mov_b32 exec_hi, 0")
for cb in range(4):
    if cb == 3: A("s_mov_b64 exec, 0x00ff00ff")
    for hfp in range(2):
        t = 2*cb + hfp
        A(f"global_store_dwordx4 v62, {vr(24+4*t,4)}, {pWS} offset:{cb*1024+16*hfp} sc1")
A("s_mov_b64 exec, -1")
stamp(4)

LBL("L_t3_check")
if OPT["NOTAIL"]: A("s_endpgm")
A(f"s_cmp_lt_u32 {sIDX}, 28")
A("s_cbranch_scc1 L_end")
A(f"s_sub_u32 s6, {sIDX}, 28")
A("s_lshl_b32 s6, s6, 3")
A(f"s_add_u32 s6, s6, {sX}")
A("s_cmp_ge_u32 s6, 28")
A("s_cbranch_scc1 L_end")
C("===== T3: final reduce for columns 16f..16f+15 =====")
A("v_lshrrev_b32 v60, 3, v0")
A("v_lshlrev_b32 v60, 12, v60")
A("v_and_b32 v61, 7, v0")
A("v_lshl_add_u32 v60, v61, 4, v60")
A("s_lshl_b32 s13, s6, 7")
A("v_add_u32 v60, s13, v60")
A("s_lshl_b32 s13, s6, 5")
A("v_lshlrev_b32 v61, 2, v61")
A("v_add_u32 v61, s13, v61")
A(f"global_load_dword v56, v61, {pB2}")
A(f"s_mov_b32 s64, {AVEC}"); A(f"s_mov_b32 s65, {AVEC+128*VSTR}"); A(f"s_mov_b32 s66, {BVEC}"); A(f"s_mov_b32 s67, {BVEC+128*VSTR}")
if not OPT["BS"]:
    A(f"s_cmp_ge_u32 {sWAVE}, 12")
    A("s_cbranch_scc1 L_t3_p3")
    loads = [f"buffer_load_dwordx4 {vr(16+4*k,4)}, v60, {srdWS}, s{64+k} offen sc1" for k in range(4)]
    poll("t3a", loads, [17+2*k for k in range(8)])
    A("s_branch L_t3_sum")
    LBL("L_t3_p3")
    A("v_mov_b32 v28, 0"); A("v_mov_b32 v30, 0")
    poll("t3b", loads[:3], [17+2*k for k in range(6)])
else:
    loads = [f"buffer_load_dwordx4 {vr(16+4*k,4)}, v60, {srdWS}, s{64+k} offen sc1" for k in range(4)]
    A(f"s_cmp_ge_u32 {sWAVE}, 12")
    A("s_cbranch_scc1 L_t3_p3")
    poll("t3b2", loads[2:4], [25, 27, 29, 31])
    A("s_branch L_t3_pa")
    LBL("L_t3_p3")
    A("v_mov_b32 v28, 0"); A("v_mov_b32 v30, 0")
    poll("t3b1", loads[2:3], [25, 27])
    LBL("L_t3_pa")
    if OPT["T3F"]:
        C("MLP branch, gate and bias are combined before the attention part arrives")
        A("v_add_f32 v42, v24, v28"); A("v_add_f32 v43, v26, v30")
        A("s_nop 0")
        for r in (42, 43): A(f"v_add_f32_dpp {v(r)}, {v(r)}, {v(r)} row_ror:8 {DPPALL}")
        xrow_allreduce("v_add_f32", [42, 43], [44, 45])
        A(f"v_lshlrev_b32 v62, 3, {v(vLANE)}")
        A(f"s_lshl_b32 s13, {sWAVE}, 6")
        A("v_add_u32 v62, s13, v62")
        A("s_mov_b64 exec, 0xff")
        A(f"ds_write_b64 v62, v[42:43] offset:{RED}")
        A("s_mov_b64 exec, -1")
        A("s_waitcnt lgkmcnt(0)")
        A("s_barrier")
        A(f"s_cmp_lg_u32 {sWAVE}, 0")
        A("s_cbranch_scc1 L_t3_a")
        A(f"v_lshlrev_b32 v63, 3, {v(vLANE)}")
        A(f"ds_read_b64 v[42:43], v63 offset:{RED}")
        A(f"ds_read_b64 v[44:45], v63 offset:{RED+512}")
        A("v_mov_b32 v59, 0")
        A(f"ds_read_b32 v57, v59 offset:{GATE}")
        A("s_waitcnt lgkmcnt(0)")
        A("v_add_f32 v42, v42, v44"); A("v_add_f32 v43, v43, v45")
        A("s_nop 0")
        for r in (42, 43): A(f"v_add_f32_dpp {v(r)}, {v(r)}, {v(r)} row_ror:8 {DPPALL}")
        xrow_allreduce("v_add_f32", [42, 43], [44, 45])
        A("v_cvt_pk_bf16_f32 v42, v42, v43")
        unpack(44, 45, 42); unpack(46, 47, 56)
        A("v_add_f32 v44, v44, v46"); A("v_add_f32 v45, v45, v47")
        A("v_cvt_pk_bf16_f32 v42, v44, v45")
        A("v_sub_f32 v58, 1.0, v57")
        rnd(58)
        unpack(46, 47, 42)
        A("v_mul_f32 v46, v46, v58"); A("v_mul_f32 v47, v47, v58")
        A("v_cvt_pk_bf16_f32 v42, v46, v47")
        unpack(50, 51, 42)
        LBL("L_t3_a")
    poll("t3a", loads[0:2], [17, 19, 21, 23])
if OPT["BS"] and OPT["T3F"]:
    stamp(5)
    A("v_add_f32 v40, v16, v20"); A("v_add_f32 v41, v18, v22")
    A("s_nop 0")
    for r in (40, 41): A(f"v_add_f32_dpp {v(r)}, {v(r)}, {v(r)} row_ror:8 {DPPALL}")
    xrow_allreduce("v_add_f32", [40, 41], [44, 45])
    A("s_mov_b64 exec, 0xff")
    A(f"ds_write_b64 v62, v[40:41] offset:{RED+1024}")
    A("s_mov_b64 exec, -1")
    A("s_waitcnt lgkmcnt(0)")
    A("s_barrier")
    A(f"s_cmp_lg_u32 {sWAVE}, 0")
    A("s_cbranch_scc1 L_end")
    A(f"ds_read_b64 v[40:41], v63 offset:{RED+1024}")
    A(f"ds_read_b64 v[44:45], v63 offset:{RED+1536}")
    A("s_waitcnt lgkmcnt(0)")
    A("v_add_f32 v40, v40, v44"); A("v_add_f32 v41, v41, v45")
    A("s_nop 0")
    for r in (40, 41): A(f"v_add_f32_dpp {v(r)}, {v(r)}, {v(r)} row_ror:8 {DPPALL}")
    xrow_allreduce("v_add_f32", [40, 41], [44, 45])
    A("v_cvt_pk_bf16_f32 v40, v40, v41")
    unpack(44, 45, 40)
    A("v_mul_f32 v44, v44, v57"); A("v_mul_f32 v45, v45, v57")
    A("v_cvt_pk_bf16_f32 v40, v44, v45")
    unpack(44, 45, 40)
    A("v_add_f32 v44, v44, v50"); A("v_add_f32 v45, v45, v51")
    A("v_cvt_pk_bf16_f32 v40, v44, v45")
else:
    LBL("L_t3_sum")
    stamp(5)
    A("v_add_f32 v40, v16, v20"); A("v_add_f32 v41, v18, v22"); A("v_add_f32 v42, v24, v28"); A("v_add_f32 v43, v26, v30")
    for r in range(40, 44): A(f"v_add_f32_dpp {v(r)}, {v(r)}, {v(r)} row_ror:8 {DPPALL}")
    xrow_allreduce("v_add_f32", [40, 41, 42, 43], [44, 45, 46, 47])
    A(f"v_lshlrev_b32 v62, 4, {v(vLANE)}")
    A(f"s_lshl_b32 s13, {sWAVE}, 7")
    A("v_add_u32 v62, s13, v62")
    A("s_mov_b64 exec, 0xff")
    A(f"ds_write_b128 v62, v[40:43] offset:{RED}")
    A("s_mov_b64 exec, -1")
    A("s_waitcnt lgkmcnt(0)")
    A("s_barrier")
    A(f"s_cmp_lg_u32 {sWAVE}, 0")
    A("s_cbranch_scc1 L_end")
    A(f"v_lshlrev_b32 v62, 4, {v(vLANE)}")
    A(f"ds_read_b128 v[40:43], v62 offset:{RED}")
    A(f"ds_read_b128 v[44:47], v62 offset:{RED+1024}")
    A("v_mov_b32 v62, 0")
    A(f"ds_read_b32 v57, v62 offset:{GATE}")
    A("s_waitcnt lgkmcnt(0)")
    for k in range(4): A(f"v_add_f32 {v(40+k)}, {v(40+k)}, {v(44+k)}")
    for r in range(40, 44): A(f"v_add_f32_dpp {v(r)}, {v(r)}, {v(r)} row_ror:8 {DPPALL}")
    xrow_allreduce("v_add_f32", [40, 41, 42, 43], [44, 45, 46, 47])
    C("epilogue with the reference's bf16 roundings")
    A("v_cvt_pk_bf16_f32 v40, v40, v41")
    A("v_cvt_pk_bf16_f32 v42, v42, v43")
    unpack(44, 45, 42); unpack(46, 47, 56)
    A("v_add_f32 v44, v44, v46"); A("v_add_f32 v45, v45, v47")
    A("v_cvt_pk_bf16_f32 v42, v44, v45")
    A("v_sub_f32 v58, 1.0, v57")
    rnd(58)
    unpack(44, 45, 40)
    A("v_mul_f32 v44, v44, v57"); A("v_mul_f32 v45, v45, v57")
    A("v_cvt_pk_bf16_f32 v40, v44, v45")
    unpack(46, 47, 42)
    A("v_mul_f32 v46, v46, v58"); A("v_mul_f32 v47, v47, v58")
    A("v_cvt_pk_bf16_f32 v42, v46, v47")
    unpack(44, 45, 40); unpack(46, 47, 42)
    A("v_add_f32 v44, v44, v46"); A("v_add_f32 v45, v45, v47")
    A("v_cvt_pk_bf16_f32 v40, v44, v45")
A("s_mov_b64 exec, 0xff")
A(f"global_store_dword v61, v40, {pOUT}")
A("s_cmp_lg_u32 s6, 0")
A("s_cbranch_scc1 L_noepoch")
A(f"s_add_u32 {sEP}, {sEP}, 1")
A(f"v_mov_b32 v44, {sEP}")
A(f"v_mov_b32 v45, {EPOCH}")
A("s_mov_b64 exec, 1")
A(f"global_store_dword v45, v44, {pWS} sc1")
LBL("L_noepoch")
A("s_mov_b64 exec, -1")
stamp(6)
LBL("L_end")
A("s_endpgm")

hdr = open("cdna_kernels/%s.s.ref" % NAME).read().split("; Override launch geometry")[0]
out = hdr
out += "; generated by gen/gen6.py (hand-written generator)\n"
out += f"; @launch grid=(256,1,1) block=(1024,1,1) lds={LDS_BYTES}\n"
out += '.amdgcn_target "amdgcn-amd-amdhsa--gfx950"\n.text\n'
out += f".globl {NAME}_kernel\n.p2align 8\n.type {NAME}_kernel,@function\n"
out += "\n".join(L) + "\n"
out += f""".section .rodata,"a"
.p2align 6
.amdhsa_kernel {NAME}_kernel
  .amdhsa_next_free_vgpr 128
  .amdhsa_next_free_sgpr 96
  .amdhsa_accum_offset 128
  .amdhsa_group_segment_fixed_size 0
  .amdhsa_kernarg_size 112
  .amdhsa_user_sgpr_count 2
  .amdhsa_user_sgpr_kernarg_segment_ptr 1
  .amdhsa_system_sgpr_workgroup_id_x 1
.end_amdhsa_kernel
"""
open(sys.argv[1], "w").write(out)
print("LDS", LDS_BYTES, "instrs", sum(1 for l in L if l.startswith("    ") and not l.strip().startswith(";")))
```

```python
import struct, sys, math

NAME = "gated_mix__gqa_block_cached__dense_activation_gelu__decode"
def f32(x): return "0x%08x" % struct.unpack("<I", struct.pack("<f", x))[0]

OPT = dict(POL="nt", VPOL="nt", SLEEP=2, STAMP=0, SPOL="nt", PRIO=1, NACT=2, RSR=48, HP=1, NOTAIL=0, PT=4, W16=1, CWO=4, ROT=2048, NJ=0, JR=56, JC=0, PM=1, BS=1, T2F=1, T3F=1, OUTSC=1)
for a in sys.argv[2:]:
    k, v_ = a.split("=")
    OPT[k] = v_ if not v_.lstrip("-").isdigit() else int(v_)
SPOL = OPT["SPOL"].replace("_", " ") if OPT["SPOL"] != "none" else ""
HP = OPT["HP"]; LHP = HP.bit_length()-1; NG = 8//HP; NP = 32*HP; WPH = 16//HP
NACT = OPT["NACT"]; CW = OPT["CWO"] or NACT//HP; LCW = CW.bit_length()-1; ROW = NP*CW; LROW = ROW.bit_length()-1
NR = 8192//ROW; R0 = 2*WPH//CW; RSr = OPT["RSR"]*NR//64
MD = max(1, OPT["PT"]//CW); ML_ = max(1, 8//CW)
assert CW >= 1 and (NR-RSr) % MD == 0 and RSr-R0-ML_ > 0 and RSr-R0-ML_ < 128

L = []
def A(s): L.append("    " + s)
def LBL(s): L.append(s + ":")
def C(s): L.append("    ; " + s)

QBF, TKB, GATE, ML, WGT, RED, WOBUF, OBUF = 0, 2048, 2096, 2176, 2432, 2688, 4736, 19456
TKT, NEXT, CBASE, QFLAG = TKB, TKB+4, TKB+8, TKB+12
LDS_BYTES = OBUF + 32768
MCNT = GATE + 4
PART = 0
AVEC, BVEC, VSTR = 0x400000, 0x500000, 4096
QX, CNTB, EPOCH = 0x600000, 0x610000, 0x1F00
sWAVE, sPG, sJ, sC, sTAG, sJJ, sEP = "s3", "s4", "s5", "s9", "s10", "s11", "s15"
sBASE, sHW, sX, sIDX, sPEND, sFET, sCOFF, sCB, sHT, sSL, sSEL, sCB2 = "s78", "s79", "s80", "s81", "s82", "s83", "s84", "s85", "s86", "s87", "s88", "s89"
sROT = "s90"
pX, pK, pV, pWQ, pWO, pW1, pB1, pW2, pB2, pGW, pOUT, pDBG, pWS = (
    "s[16:17]", "s[18:19]", "s[20:21]", "s[22:23]", "s[24:25]", "s[28:29]", "s[30:31]",
    "s[32:33]", "s[34:35]", "s[36:37]", "s[38:39]", "s[40:41]", "s[42:43]")
srdK, srdV, srdT, srdWS = "s[44:47]", "s[48:51]", "s[52:55]", "s[56:59]"
vG, vLANE, vN = 1, 2, 3
MASK = 4
ACC = 8
Q = 16
vT2, vMR = 32, 33
vMC, vL = 34, 35
D = 36
vTA, vTB, vPK, vSA, vSB, vTM, vPA, vPB = 40, 41, 42, 43, 44, 45, 46, 47
AOP = 48
vT0, vT1, vKV, vLP = 56, 57, 58, 59
vTK, vONE, vZ = 60, 61, 62
STG = 64
def v(i): return "v%d" % i
def vr(i, n): return "v[%d:%d]" % (i, i + n - 1)
KOFF = [0, 256, 2048, 2304]
def issue_K(st):
    for k in range(4):
        A(f"buffer_load_dwordx4 {vr(STG+32*st+4*k,4)}, {v(vKV)}, {srdK}, 0 offen offset:{KOFF[k]} {OPT['POL'].replace('_',' ')}")
def issue_V(st):
    for k in range(4):
        A(f"buffer_load_dwordx4 {vr(STG+32*st+16+4*k,4)}, {v(vKV)}, {srdV}, 0 offen offset:{KOFF[k]} {OPT['VPOL'].replace('_',' ')}")
DPPALL = "row_mask:0xf bank_mask:0xf"
def row_allreduce(op, regs, pats=("quad_perm:[1,0,3,2]", "quad_perm:[2,3,0,1]", "row_half_mirror", "row_mirror")):
    for pat in pats:
        if len(regs) < 3: A("s_nop 1")
        for r in regs:
            A(f"{op}_dpp {v(r)}, {v(r)}, {v(r)} {pat} {DPPALL}")
def xrow_allreduce(op, regs, tmps, which=(32, 16)):
    for w in which:
        for r, t in zip(regs, tmps): A(f"v_mov_b32 {v(t)}, {v(r)}")
        A("s_nop 1")
        for r, t in zip(regs, tmps): A(f"v_permlane{w}_swap_b32 {v(r)}, {v(t)}")
        for r, t in zip(regs, tmps): A(f"{op} {v(r)}, {v(r)}, {v(t)}")
def poll(name, loads, tags):
    A("s_mov_b32 s12, 200000")
    LBL(f"L_poll_{name}")
    for l in loads: A(l)
    A("s_waitcnt vmcnt(0)")
    for t in tags: A(f"v_xor_b32 {v(t)}, {sTAG}, {v(t)}")
    regs = list(tags)
    while len(regs) > 1:
        nxt = []
        while len(regs) >= 3:
            A(f"v_or3_b32 {v(regs[0])}, {v(regs[0])}, {v(regs[1])}, {v(regs[2])}"); nxt.append(regs[0]); regs = regs[3:]
        if len(regs) == 2 and not nxt:
            A(f"v_or_b32 {v(regs[0])}, {v(regs[0])}, {v(regs[1])}"); nxt.append(regs[0]); regs = []
        regs = nxt + regs
    A(f"v_cmp_ne_u32 vcc, 0, {v(tags[0])}")
    A(f"s_cbranch_vccz L_done_{name}")
    A("s_mov_b64 exec, vcc")
    if OPT["SLEEP"]: A(f"s_sleep {OPT['SLEEP']}")
    A("s_sub_u32 s12, s12, 1")
    A("s_cmp_lg_u32 s12, 0")
    A(f"s_cbranch_scc1 L_poll_{name}")
    LBL(f"L_done_{name}")
    A("s_mov_b64 exec, -1")
def stamp(idx):
    if not OPT["STAMP"]: return
    A("s_memrealtime s[70:71]")
    A("s_waitcnt lgkmcnt(0)")
    A("v_mov_b32 v36, s70"); A("v_mov_b32 v37, s71")
    A("s_lshl_b32 s72, s2, 8")
    A(f"s_lshl_b32 s73, {sWAVE}, 4")
    A(f"s_add_u32 s72, s72, {0x800000 + idx*0x100000}")
    A("s_add_u32 s72, s72, s73")
    A("v_mov_b32 v38, s72")
    A("s_mov_b64 s[74:75], exec")
    A("s_mov_b64 exec, 1")
    A(f"global_store_dwordx2 v38, v[36:37], {pWS}")
    if idx == 0:
        A("s_getreg_b32 s70, hwreg(HW_REG_XCC_ID)")
        A("v_mov_b32 v36, s70")
        A(f"global_store_dword v38, v36, {pWS} offset:8")
    A("s_mov_b64 exec, s[74:75]")
def unpack(lo, hi, src):
    A(f"v_lshlrev_b32 {v(lo)}, 16, {v(src)}")
    A(f"v_and_b32 {v(hi)}, 0xffff0000, {v(src)}")
def rnd(r):
    A(f"v_cvt_pk_bf16_f32 {v(r)}, {v(r)}, {v(r)}")
    A(f"v_lshlrev_b32 {v(r)}, 16, {v(r)}")
def srd(base4, lo, hi, size):
    A(f"s_mov_b32 s{base4}, {lo}"); A(f"s_mov_b32 s{base4+1}, {hi}"); A(f"s_mov_b32 s{base4+2}, {size}"); A(f"s_mov_b32 s{base4+3}, 0x20000")
def tagcalc():
    A("s_waitcnt lgkmcnt(0)")
    A(f"s_mul_i32 {sTAG}, {sEP}, 0x9E3779B1")
    A(f"s_add_u32 {sTAG}, {sTAG}, 0x7F4A7C15")

LBL(NAME + "_kernel")
A("s_cmp_ge_u32 s2, 256")
A("s_cbranch_scc1 L_end")
A("s_load_dwordx16 s[16:31], s[0:1], 0")
A("s_load_dwordx8 s[32:39], s[0:1], 64")
A("s_load_dwordx4 s[40:43], s[0:1], 96")
A(f"v_lshrrev_b32 v1, 6, v0")
A(f"v_and_b32 {v(vLANE)}, 63, v0")
A(f"v_readfirstlane_b32 {sWAVE}, v1")
C("x = wg&7, idx = wg>>3 ; group pg serves heads pg + k*NG ; j = index inside the group")
A(f"s_and_b32 {sX}, s2, 7")
A(f"s_lshr_b32 {sIDX}, s2, 3")
A(f"s_lshr_b32 {sPG}, {sIDX}, {2+LHP}")
A(f"s_lshl_b32 {sJ}, {sX}, {2+LHP}")
A(f"s_and_b32 s6, {sIDX}, {4*HP-1}")
A(f"s_or_b32 {sJ}, {sJ}, s6")
A(f"s_and_b32 {sSEL}, {sWAVE}, {HP-1}")
A(f"s_mul_i32 {sHW}, {sSEL}, {NG}")
A(f"s_add_u32 {sHW}, {sHW}, {sPG}")
A(f"s_lshr_b32 s6, {sJ}, 5")
A(f"s_mul_i32 {sHT}, s6, {NG}")
A(f"s_add_u32 {sHT}, {sHT}, {sPG}")
A(f"s_and_b32 {sSL}, {sJ}, 31")
A(f"s_lshl_b32 {sCOFF}, {sHW}, 12")
A(f"s_add_u32 {sCOFF}, {sCOFF}, {CNTB}")
A(f"v_and_b32 {v(vN)}, 15, {v(vLANE)}")
A(f"v_lshrrev_b32 {v(vG)}, 4, {v(vLANE)}")
A(f"v_lshlrev_b32 {v(vLP)}, 9, {v(vG)}")
A(f"v_lshl_add_u32 {v(vLP)}, {v(vN)}, 4, {v(vLP)}")
C("column layout: local tile u -> tile (u/CW)*ROW + CW*j + u%CW ; first u = wave/HP")
A(f"s_lshr_b32 s7, {sWAVE}, {LHP}")
A(f"s_lshr_b32 s6, s7, {LCW}")
A(f"s_lshl_b32 s6, s6, {LROW}")
A(f"s_and_b32 s7, s7, {CW-1}")
A("s_add_u32 s6, s6, s7")
if OPT["JC"] == 0:
    A(f"s_lshl_b32 {sBASE}, {sJ}, {LCW}")
else:
    C("stream column: neighbouring columns on different XCDs")
    A(f"s_and_b32 {sBASE}, {sIDX}, {4*HP-1}")
    A(f"s_lshl_b32 {sBASE}, {sBASE}, 3")
    A(f"s_or_b32 {sBASE}, {sBASE}, {sX}")
    A(f"s_lshl_b32 {sBASE}, {sBASE}, {LCW}")
A(f"s_add_u32 s6, s6, {sBASE}")
if OPT["ROT"]:
    C("each head walks its keys from a different starting tile")
    A(f"s_mul_i32 {sROT}, {sHW}, {OPT['ROT']}")
    A(f"s_add_u32 s6, s6, {sROT}")
    A("s_add_u32 s7, s6, 512")
    A("s_and_b32 s6, s6, 8191")
    A("s_and_b32 s7, s7, 8191")
    A("s_lshl_b32 s91, s7, 12")
A("s_lshl_b32 s6, s6, 12")
A(f"v_add_u32 {v(vKV)}, s6, {v(vLP)}")
A("s_waitcnt lgkmcnt(0)")
A(f"s_load_dword {sEP}, {pWS}, {EPOCH}")
A(f"s_lshl_b32 s6, {sHW}, 25")
A("s_add_u32 s44, s18, s6"); A("s_addc_u32 s45, s19, 0"); A("s_mov_b32 s46, 0x2000000"); A("s_mov_b32 s47, 0x20000")
A("s_add_u32 s48, s20, s6"); A("s_addc_u32 s49, s21, 0"); A("s_mov_b32 s50, 0x2000000"); A("s_mov_b32 s51, 0x20000")
srd(56, "s42", "s43", "0x40000000")
stamp(0)
A(f"s_cmp_ge_u32 {sWAVE}, 3")
A("s_cbranch_scc1 L_kv0")
if OPT["PRIO"]: A("s_setprio 3")
A(f"s_cmp_eq_u32 {sWAVE}, 1")
A("s_cbranch_scc1 L_w1")
A(f"s_cmp_eq_u32 {sWAVE}, 2")
A("s_cbranch_scc1 L_w2")

C("===== wave 0: 16-column slice of q = x @ wq ; publish ; gather the group's q =====")
C("LDS may hold an earlier launch's flags: clear them before the start barrier")
A("v_mov_b32 v62, 0")
for k in range(HP): A(f"ds_write_b32 v62, v62 offset:{QFLAG+16*k}")
A(f"ds_write_b32 v62, v62 offset:{MCNT}")
srd(52, "s22", "s23", 448*8192)
A(f"v_lshrrev_b32 v60, 1, {v(vLANE)}")
A("v_lshlrev_b32 v61, 13, v60")
A(f"v_and_b32 v62, 1, {v(vLANE)}")
A("v_lshl_add_u32 v61, v62, 4, v61")
C("work counters of the group's heads: their value now is this launch's zero")
A(f"s_load_dword {sCB}, {pWS}, {sCOFF}")
if HP == 2:
    A(f"s_add_u32 s13, {sCOFF}, {NG*4096}")
    A(f"s_load_dword {sCB2}, {pWS}, s13")
A(f"s_lshl_b32 s12, {sHT}, 10")
A(f"s_lshl_b32 s13, {sSL}, 5")
A("s_add_u32 s12, s12, s13")
for k in range(14):
    A(f"buffer_load_dwordx4 {vr(64+4*k,4)}, v61, {srdT}, s12 offen {SPOL}")
    if k < 13: A(f"s_add_u32 s12, s12, {32*8192}")
A("v_lshlrev_b32 v60, 1, v60")
for k in range(14):
    A(f"global_load_ushort {v(16+k)}, v60, {pX} offset:{64*k}")
A("s_waitcnt lgkmcnt(0)")
A("s_barrier")
A("v_mov_b32 v62, 0")
A(f"s_add_u32 s13, {sBASE}, {R0*ROW}")
A("s_lshl_b32 s13, s13, 19")
A(f"s_or_b32 s13, s13, {(RSr-R0-ML_)<<12}")
A("v_mov_b32 v60, s13")
A(f"s_add_u32 s13, {sBASE}, {(RSr-ML_)*ROW}")
A("s_lshl_b32 s13, s13, 19")
A(f"s_or_b32 s13, s13, {ML_<<12}")
A("v_mov_b32 v61, s13")
for k in range(HP): A(f"ds_write_b64 v62, v[60:61] offset:{TKT+16*k}")
tagcalc()
A(f"v_mov_b32 v61, {sCB}")
A(f"ds_write_b32 v62, v61 offset:{CBASE}")
if HP == 2:
    A(f"v_mov_b32 v60, {sCB2}")
    A(f"ds_write_b32 v62, v60 offset:{CBASE+16}")
A("s_mov_b32 s13, 0x05040100")
A("s_mov_b32 s14, 0x07060302")
A("s_waitcnt vmcnt(0)")
for kp in range(7):
    A(f"v_lshl_or_b32 {v(16+2*kp)}, {v(17+2*kp)}, 16, {v(16+2*kp)}")
for kp in range(7):
    a, b = 64+8*kp, 68+8*kp
    for d in range(4):
        A(f"v_perm_b32 {v(48+2*d)}, {v(b+d)}, {v(a+d)}, s13")
        A(f"v_perm_b32 {v(49+2*d)}, {v(b+d)}, {v(a+d)}, s14")
    for c in range(8):
        A(f"v_dot2_f32_bf16 {v(40+c)}, {v(48+c)}, {v(16+2*kp)}, {'0' if kp==0 else v(40+c)}")
A("s_nop 2")
row_allreduce("v_add_f32", list(range(40, 48)), pats=("row_ror:8", "row_ror:4", "row_ror:2"))
xrow_allreduce("v_add_f32", list(range(40, 48)), list(range(48, 56)))
for k in range(4):
    A(f"v_cvt_pk_bf16_f32 {v(48+2*k)}, {v(40+2*k)}, {v(41+2*k)}")
    A(f"v_mov_b32 {v(49+2*k)}, {sTAG}")
A(f"v_lshlrev_b32 v60, 5, {v(vLANE)}")
A(f"s_lshl_b32 s13, {sSL}, 6")
A(f"s_lshl_b32 s14, {sHT}, 11")
A("s_add_u32 s13, s13, s14")
A(f"s_add_u32 s13, s13, {QX}")
A("v_add_u32 v61, s13, v60")
A(f"s_lshl_b32 s12, {sPG}, 11")
A(f"s_add_u32 s12, s12, {QX}")
A("v_add_u32 v60, s12, v60")
A("s_mov_b64 exec, 3")
A(f"global_store_dwordx4 v61, v[48:51], {pWS} sc1")
A(f"global_store_dwordx4 v61, v[52:55], {pWS} offset:16 sc1")
A("s_mov_b64 exec, -1")
stamp(11)
A(f"s_mov_b32 s13, {NG*2048}")
loads, tags = [], []
for k in range(HP):
    so = "0" if k == 0 else "s13"
    loads += [f"buffer_load_dwordx4 {vr(16+8*k,4)}, v60, {srdWS}, {so} offen sc1", f"buffer_load_dwordx4 {vr(20+8*k,4)}, v60, {srdWS}, {so} offen offset:16 sc1"]
    tags += [17+8*k, 19+8*k, 21+8*k, 23+8*k]
poll("q", loads, tags)
stamp(12)
A(f"v_lshlrev_b32 v62, 4, {v(vLANE)}")
for k in range(HP):
    b = 16+8*k
    A(f"v_mov_b32 {v(b+1)}, {v(b+2)}"); A(f"v_mov_b32 {v(b+2)}, {v(b+4)}"); A(f"v_mov_b32 {v(b+3)}, {v(b+6)}")
    A(f"ds_write_b128 v62, {vr(b,4)} offset:{QBF+1024*k}")
A("v_mov_b32 v62, 0")
A("v_mov_b32 v61, 1")
A("s_waitcnt lgkmcnt(0)")
for k in range(HP): A(f"ds_write_b32 v62, v61 offset:{QFLAG+16*k}")
A("s_branch L_kv")

LBL("L_w1")
A(f"s_cmp_ge_u32 {sIDX}, 28")
A("s_cbranch_scc1 L_gate")
C("===== wave 1: MLP slice f = 8jj..8jj+7 =====")
A(f"s_mul_i32 {sJJ}, {sX}, 28")
A(f"s_add_u32 {sJJ}, {sJJ}, {sIDX}")
srd(52, "s28", "s29", 448*3584)
A(f"s_lshl_b32 s13, {sJJ}, 4")
A(f"s_load_dwordx4 s[64:67], {pB1}, s13")
A(f"v_mul_u32_u24 v61, 3584, {v(vLANE)}")
for k in range(7):
    A(f"buffer_load_dwordx4 {vr(64+4*k,4)}, v61, {srdT}, s13 offen {SPOL}")
    if k < 6: A(f"s_add_u32 s13, s13, {64*3584}")
A(f"v_lshlrev_b32 v60, 1, {v(vLANE)}")
for k in range(7):
    A(f"global_load_ushort {v(16+k)}, v60, {pX} offset:{128*k}")
A(f"s_mul_i32 s12, {sJJ}, 7168")
A("s_add_u32 s12, s12, 3584")
A(f"v_lshlrev_b32 v62, 4, {v(vLANE)}")
A("v_add_u32 v62, s12, v62")
A("s_mov_b32 exec_hi, 0x00ffffff")
for rr in range(8):
    A(f"global_load_dwordx4 {vr(92+4*rr,4)}, v62, {pW2} offset:{rr*896-3584} {SPOL}")
A("s_mov_b64 exec, -1")
A("s_barrier")
tagcalc()
A("s_waitcnt vmcnt(8)")
for k in range(7):
    A(f"v_lshlrev_b32 {v(16+k)}, 16, {v(16+k)}")
    for d in range(4): unpack(48+2*d, 49+2*d, 64+4*k+d)
    for c in range(8):
        if k == 0: A(f"v_mul_f32 {v(40+c)}, {v(48+c)}, {v(16+k)}")
        else: A(f"v_fmac_f32 {v(40+c)}, {v(48+c)}, {v(16+k)}")
row_allreduce("v_add_f32", list(range(40, 48)))
xrow_allreduce("v_add_f32", list(range(40, 48)), list(range(48, 56)))
k2 = -2.0*math.sqrt(2.0/math.pi)*math.log2(math.e)
A(f"v_mov_b32 v56, {f32(k2)}")
A(f"s_mov_b32 s12, {f32(k2*0.044715)}")
for c in range(8):
    sreg = 64 + c//2
    if c % 2 == 0: A(f"s_lshl_b32 s13, s{sreg}, 16")
    else: A(f"s_and_b32 s13, s{sreg}, 0xffff0000")
    rnd(40+c)
    A(f"v_add_f32 {v(40+c)}, s13, {v(40+c)}")
    rnd(40+c)
for c in range(8): A(f"v_mul_f32 {v(48+c)}, {v(40+c)}, {v(40+c)}")
for c in range(8): A(f"v_fma_f32 {v(48+c)}, {v(48+c)}, s12, v56")
for c in range(8): A(f"v_mul_f32 {v(48+c)}, {v(48+c)}, {v(40+c)}")
for c in range(8): A(f"v_exp_f32 {v(48+c)}, {v(48+c)}")
for c in range(8): A(f"v_add_f32 {v(48+c)}, 1.0, {v(48+c)}")
for c in range(8): A(f"v_rcp_f32 {v(48+c)}, {v(48+c)}")
for c in range(8): A(f"v_mul_f32 {v(40+c)}, {v(40+c)}, {v(48+c)}")
for c in range(8): rnd(40+c)
A("s_waitcnt vmcnt(0)")
for rr in range(8):
    for d in range(4): unpack(48+2*d, 49+2*d, 92+4*rr+d)
    for c in range(8):
        if rr == 0: A(f"v_mul_f32 {v(64+2*c)}, {v(48+c)}, {v(40+rr)}")
        else: A(f"v_fmac_f32 {v(64+2*c)}, {v(48+c)}, {v(40+rr)}")
for c in range(8): A(f"v_mov_b32 {v(65+2*c)}, {sTAG}")
A(f"s_lshl_b32 s12, {sJJ}, 12")
A(f"s_add_u32 s12, s12, {BVEC}")
A(f"v_lshlrev_b32 v62, 6, {v(vLANE)}")
A("v_add_u32 v62, s12, v62")
A("s_mov_b32 exec_hi, 0x00ffffff")
for t in range(4):
    A(f"global_store_dwordx4 v62, {vr(64+4*t,4)}, {pWS} offset:{16*t} sc1")
A("s_mov_b64 exec, -1")
A("s_waitcnt vmcnt(0)")
A("s_branch L_kv")
LBL("L_gate")
C("gate: sigmoid(bf16(sum(bf16(x*gw))))")
for k in range(8): A(f"v_mov_b32 {v(16+k)}, 0")
A(f"v_lshlrev_b32 v62, 4, {v(vLANE)}")
A("s_mov_b32 exec_hi, 0x00ffffff")
A(f"global_load_dwordx4 v[16:19], v62, {pX}")
A(f"global_load_dwordx4 v[20:23], v62, {pGW}")
A("s_mov_b64 exec, -1")
A("s_barrier")
A("s_waitcnt vmcnt(0)")
for k in range(4):
    unpack(40, 41, 16+k); unpack(42, 43, 20+k)
    A("v_mul_f32 v40, v40, v42")
    A("v_mul_f32 v41, v41, v43")
    A("v_cvt_pk_bf16_f32 v40, v40, v41")
    unpack(42, 43, 40)
    if k == 0: A("v_add_f32 v44, v42, v43")
    else:
        A("v_add_f32 v44, v44, v42"); A("v_add_f32 v44, v44, v43")
row_allreduce("v_add_f32", [44])
xrow_allreduce("v_add_f32", [44], [45])
rnd(44)
A(f"v_mul_f32 v44, {f32(-math.log2(math.e))}, v44")
A("v_exp_f32 v44, v44")
A("s_nop 0")
A("v_add_f32 v44, 1.0, v44")
A("v_rcp_f32 v44, v44")
A("s_nop 0")
rnd(44)
A("v_mov_b32 v62, 0")
A("s_mov_b64 exec, 1")
A(f"ds_write_b32 v62, v44 offset:{GATE}")
A("s_mov_b64 exec, -1")
A("s_branch L_kv")

LBL("L_w2")
C("===== wave 2: 16 rows of wo (14336 B contiguous) straight into LDS =====")
srd(52, "s24", "s25", 4096*896)
A(f"s_lshl_b32 s12, {sHT}, 5")
A(f"s_add_u32 s12, s12, {sSL}")
A("s_mul_i32 s12, s12, 14336")
A(f"v_lshlrev_b32 v62, 4, {v(vLANE)}")
for k in range(14):
    if k % 4 == 0:
        A(f"s_mov_b32 m0, {WOBUF + 1024*k}")
        if k: A("s_add_u32 s12, s12, 4096")
        else: A("s_nop 0")
    A(f"buffer_load_dwordx4 v62, {srdT}, s12 offen offset:{1024*(k%4)} {SPOL} lds")

LBL("L_kv0")
A("s_barrier")
LBL("L_kv")
if OPT["PRIO"]: A("s_setprio 2")
issue_K(0); issue_V(0)
if OPT["ROT"]: A(f"v_add_u32 {v(vKV)}, s91, {v(vLP)}")
else: A(f"v_add_u32 {v(vKV)}, 0x200000, {v(vKV)}")
issue_K(1); issue_V(1)
if OPT["PRIO"]: A("s_setprio 0")
stamp(7)
C("diag masks")
A(f"v_and_b32 {v(vT0)}, 1, {v(vLANE)}")
A(f"v_lshlrev_b32 {v(vT0)}, 4, {v(vT0)}")
A(f"v_mov_b32 {v(vT1)}, 0xffff")
A(f"v_lshlrev_b32 {v(vT1)}, {v(vT0)}, {v(vT1)}")
A(f"v_bfe_u32 {v(vT0)}, {v(vLANE)}, 1, 2")
for k in range(4):
    A(f"v_cmp_eq_u32 vcc, {k}, {v(vT0)}")
    A("s_nop 1")
    A(f"v_cndmask_b32 {v(MASK+k)}, 0, {v(vT1)}, vcc")
A(f"s_mov_b32 {sC}, {f32(0.0625*math.log2(math.e))}")
for k in range(8): A(f"v_mov_b32 {v(ACC+k)}, 0")
A(f"v_mov_b32 {v(vMR)}, 0xff800000")
A(f"v_mov_b32 {v(vMC)}, 0xff800000")
A(f"v_mov_b32 {v(vL)}, 0")
A(f"s_lshl_b32 s12, {sSEL}, 4")
A(f"v_mov_b32 {v(vZ)}, s12")
A(f"v_mov_b32 {v(vONE)}, 1")
A(f"s_mov_b32 {sPEND}, 0")
if OPT["NJ"]: A(f"s_mov_b32 s92, {NACT}")
tagcalc()
C("wait for q (LDS flag, cleared before the start barrier)")
A("s_mov_b32 s12, 4000000")
LBL("L_qwait")
A(f"ds_read_b32 {v(vT0)}, {v(vZ)} offset:{QFLAG}")
A("s_waitcnt lgkmcnt(0)")
A(f"v_readfirstlane_b32 s13, {v(vT0)}")
A("s_cmp_eq_u32 s13, 1")
A("s_cbranch_scc1 L_qready")
A("s_sleep 1")
A("s_sub_u32 s12, s12, 1")
A("s_cmp_lg_u32 s12, 0")
A("s_cbranch_scc1 L_qwait")
LBL("L_qready")
A(f"ds_read_b32 {v(vT0)}, {v(vZ)} offset:{CBASE}")
A(f"v_lshlrev_b32 {v(vT1)}, 4, {v(vN)}")
A(f"v_lshl_add_u32 {v(vT1)}, {v(vZ)}, 6, {v(vT1)}")
for h in range(2):
    for hf in range(2):
        A(f"ds_read_b128 {vr(Q+8*h+4*hf,4)}, {v(vT1)} offset:{QBF+512*h+256*hf}")
A("s_waitcnt lgkmcnt(0)")
A(f"v_readfirstlane_b32 {sCB}, {v(vT0)}")
stamp(1)

def draw(tag):
    A("s_mov_b64 exec, 1")
    A(f"ds_add_rtn_u32 {v(vTK)}, {v(vZ)}, {v(vONE)} offset:{TKT}")
    A("s_mov_b64 exec, -1")
    LBL(f"L_chk{tag}")
    A("s_waitcnt lgkmcnt(0)")
    A(f"v_readfirstlane_b32 s14, {v(vTK)}")
    A("s_and_b32 s13, s14, 0xfff")
    A("s_bfe_u32 s6, s14, 0x7000c")
    A("s_lshr_b32 s12, s14, 19")
    A(f"s_lshl_b32 s6, s6, {LCW}")
    A("s_cmp_ge_u32 s13, s6")
    A(f"s_cbranch_scc1 L_slow{tag}")
    LBL(f"L_ok{tag}")
    A(f"s_lshr_b32 s6, s13, {LCW}")
    A(f"s_lshl_b32 s6, s6, {LROW}")
    A(f"s_and_b32 s13, s13, {CW-1}")
    A("s_add_u32 s12, s12, s13")
    A("s_add_u32 s12, s12, s6")
    if OPT["ROT"]:
        A(f"s_add_u32 s12, s12, {sROT}")
        A("s_and_b32 s12, s12, 8191")
    A("s_lshl_b32 s12, s12, 12")
    A(f"v_add_u32 {v(vKV)}, s12, {v(vLP)}")
def pend(tag):
    A(f"s_cmp_eq_u32 {sPEND}, 0")
    A(f"s_cbranch_scc1 L_nopend{tag}")
    C("the piece fetched from the head's global counter becomes NEXT")
    A("s_waitcnt lgkmcnt(0)")
    A(f"s_sub_u32 {sFET}, {sFET}, {sCB}")
    A(f"s_min_u32 {sFET}, {sFET}, 0x4000")
    A(f"s_lshr_b32 s12, {sFET}, {5+LHP}")
    A(f"s_mul_i32 s12, s12, {MD*ROW}")
    A(f"s_and_b32 s13, {sFET}, {NP-1}")
    A(f"s_lshl_b32 s13, s13, {LCW}")
    A("s_add_u32 s12, s12, s13")
    A(f"s_add_u32 s12, s12, {RSr*ROW}")
    A("s_lshl_b32 s13, s12, 19")
    A(f"s_or_b32 s13, s13, {MD<<12}")
    A("s_cmp_ge_u32 s12, 8192")
    A(f"s_cselect_b32 {sFET}, 0xfff80001, s13")
    A(f"v_mov_b32 {v(vT0)}, {sFET}")
    A(f"ds_write_b32 {v(vZ)}, {v(vT0)} offset:{NEXT}")
    A(f"s_mov_b32 {sPEND}, 0")
    LBL(f"L_nopend{tag}")
sACT = "s92"
def tile(st, tag, drain=False):
    K = STG + 32*st
    V = K + 16
    if not drain:
        if NACT < 16:
            A(f"s_cmp_ge_u32 {sWAVE}, {sACT if OPT['NJ'] else NACT}")
            A(f"s_cbranch_scc1 L_drain{tag}")
        draw(tag)
    A("s_waitcnt vmcnt(%d)" % (0 if drain else 12))
    for hf in range(2):
        for k in range(4):
            for grp in range(2):
                for h in range(2):
                    d = D + 2*grp + h
                    src2 = "0" if (hf == 0 and k == 0) else v(d)
                    A(f"v_dot2_f32_bf16 {v(d)}, {v(K+8*grp+4*hf+k)}, {v(Q+8*h+4*hf+k)}, {src2}")
    if not drain: issue_K(st)
    else: A("s_nop 2")
    A(f"v_add_f32_dpp {v(vTA)}, {v(D+0)}, {v(D+0)} row_ror:8 row_mask:0xf bank_mask:0x3")
    A(f"v_add_f32_dpp {v(vTB)}, {v(D+2)}, {v(D+2)} row_ror:8 row_mask:0xf bank_mask:0x3")
    A(f"v_add_f32_dpp {v(vTA)}, {v(D+1)}, {v(D+1)} row_ror:8 row_mask:0xf bank_mask:0xc")
    A(f"v_add_f32_dpp {v(vTB)}, {v(D+3)}, {v(D+3)} row_ror:8 row_mask:0xf bank_mask:0xc")
    for pat in ["row_half_mirror", "quad_perm:[1,0,3,2]", "quad_perm:[2,3,0,1]"]:
        A("s_nop 0")
        A(f"v_add_f32_dpp {v(vTA)}, {v(vTA)}, {v(vTA)} {pat} {DPPALL}")
        A(f"v_add_f32_dpp {v(vTB)}, {v(vTB)}, {v(vTB)} {pat} {DPPALL}")
    A(f"v_cvt_pk_bf16_f32 {v(vPK)}, {v(vTA)}, {v(vTB)}")
    A(f"v_lshlrev_b32 {v(vSA)}, 16, {v(vPK)}")
    A(f"v_and_b32 {v(vSB)}, 0xffff0000, {v(vPK)}")
    A(f"v_max_f32 {v(vTM)}, {v(vSA)}, {v(vSB)}")
    A(f"v_cmp_gt_f32 vcc, {v(vTM)}, {v(vMR)}")
    A(f"s_cbranch_vccz L_nomax{tag}")
    C("new running max: rescale")
    A(f"v_max_f32 {v(vTM)}, {v(vTM)}, {v(vMR)}")
    xrow_allreduce("v_max_f32", [vTM], [vT0])
    A(f"v_sub_f32 {v(vT1)}, {v(vMR)}, {v(vTM)}")
    A(f"v_mul_f32 {v(vT1)}, {sC}, {v(vT1)}")
    A(f"v_exp_f32 {v(vT1)}, {v(vT1)}")
    A(f"v_mov_b32 {v(vMR)}, {v(vTM)}")
    A(f"v_mul_f32 {v(vMC)}, {sC}, {v(vTM)}")
    A(f"v_mul_f32 {v(vL)}, {v(vL)}, {v(vT1)}")
    A(f"v_mov_b32 {v(vT2)}, {v(vT1)}")
    A("s_nop 1")
    A(f"v_mov_b32_dpp {v(vT2)}, {v(vT1)} row_ror:8 row_mask:0x3 bank_mask:0xc")
    A(f"v_mov_b32_dpp {v(vT2)}, {v(vT1)} row_ror:8 row_mask:0xc bank_mask:0x3")
    for k in range(8): A(f"v_mul_f32 {v(ACC+k)}, {v(ACC+k)}, {v(vT2)}")
    LBL(f"L_nomax{tag}")
    A(f"v_fma_f32 {v(vPA)}, {v(vSA)}, {sC}, -{v(vMC)}")
    A(f"v_fma_f32 {v(vPB)}, {v(vSB)}, {sC}, -{v(vMC)}")
    A(f"v_exp_f32 {v(vPA)}, {v(vPA)}")
    A(f"v_exp_f32 {v(vPB)}, {v(vPB)}")
    A("s_nop 0")
    A(f"v_cvt_pk_bf16_f32 {v(vT0)}, {v(vPA)}, {v(vPA)}")
    A(f"v_cvt_pk_bf16_f32 {v(vT1)}, {v(vPB)}, {v(vPB)}")
    for d in range(4): A(f"v_and_b32 {v(AOP+d)}, {v(vT0)}, {v(MASK+d)}")
    for d in range(4): A(f"v_and_b32 {v(AOP+4+d)}, {v(vT1)}, {v(MASK+d)}")
    A(f"v_add_f32 {v(vL)}, {v(vL)}, {v(vPA)}")
    A(f"v_add_f32 {v(vL)}, {v(vL)}, {v(vPB)}")
    A("s_waitcnt vmcnt(12)" if not drain else "s_nop 0")
    A(f"v_mfma_f32_16x16x32_bf16 {vr(ACC,4)}, {vr(AOP,4)}, {vr(V,4)}, {vr(ACC,4)}")
    A(f"v_mfma_f32_16x16x32_bf16 {vr(ACC+4,4)}, {vr(AOP,4)}, {vr(V+4,4)}, {vr(ACC+4,4)}")
    A(f"v_mfma_f32_16x16x32_bf16 {vr(ACC,4)}, {vr(AOP+4,4)}, {vr(V+8,4)}, {vr(ACC,4)}")
    A(f"v_mfma_f32_16x16x32_bf16 {vr(ACC+4,4)}, {vr(AOP+4,4)}, {vr(V+12,4)}, {vr(ACC+4,4)}")
    if drain: return
    issue_V(st)
    pend(tag)

def slow(tag):
    LBL(f"L_slow{tag}")
    A("s_cmp_eq_u32 s12, 0x1fff")
    A(f"s_cbranch_scc1 L_drain{tag}")
    A("s_cmp_eq_u32 s13, s6")
    A(f"s_cbranch_scc1 L_inst{tag}")
    C("chunk exhausted, another wave installs the next one: watch the word, then draw again")
    A("s_lshr_b32 s7, s14, 12")
    A("s_mov_b32 s13, 4000000")
    LBL(f"L_retry{tag}")
    A("s_sleep 1")
    A(f"ds_read_b32 {v(vT0)}, {v(vZ)} offset:{TKT}")
    A("s_waitcnt lgkmcnt(0)")
    A(f"v_readfirstlane_b32 s12, {v(vT0)}")
    A("s_lshr_b32 s12, s12, 12")
    A("s_cmp_lg_u32 s12, s7")
    A(f"s_cbranch_scc1 L_redraw{tag}")
    A("s_sub_u32 s13, s13, 1")
    A("s_cmp_lg_u32 s13, 0")
    A(f"s_cbranch_scc1 L_retry{tag}")
    A(f"s_branch L_drain{tag}")
    LBL(f"L_redraw{tag}")
    A("s_mov_b64 exec, 1")
    A(f"ds_add_rtn_u32 {v(vTK)}, {v(vZ)}, {v(vONE)} offset:{TKT}")
    A("s_mov_b64 exec, -1")
    A(f"s_branch L_chk{tag}")
    LBL(f"L_inst{tag}")
    A("s_mov_b32 s13, 4000000")
    LBL(f"L_instw{tag}")
    A(f"ds_read_b32 {v(vT0)}, {v(vZ)} offset:{NEXT}")
    A("s_waitcnt lgkmcnt(0)")
    A(f"v_readfirstlane_b32 s12, {v(vT0)}")
    A("s_cmp_lg_u32 s12, -1")
    A(f"s_cbranch_scc1 L_instg{tag}")
    A("s_sleep 1")
    A("s_sub_u32 s13, s13, 1")
    A("s_cmp_lg_u32 s13, 0")
    A(f"s_cbranch_scc1 L_instw{tag}")
    A("s_mov_b32 s12, 0xfff80001")
    LBL(f"L_instg{tag}")
    A("s_cmp_eq_u32 s12, 0xfff80001")
    A(f"s_cbranch_scc0 L_instv{tag}")
    A(f"v_mov_b32 {v(vT0)}, s12")
    A(f"ds_write_b32 {v(vZ)}, {v(vT0)} offset:{TKT}")
    A(f"s_branch L_drain{tag}")
    LBL(f"L_instv{tag}")
    C("valid chunk s12 (packed): install it (this wave takes slot 0), fetch the one after it")
    A(f"v_mov_b32 {v(vT1)}, -1")
    A(f"s_mov_b32 {sFET}, 1")
    A(f"s_atomic_add {sFET}, {pWS}, {sCOFF} glc")
    A(f"s_mov_b32 {sPEND}, 1")
    A(f"ds_write_b32 {v(vZ)}, {v(vT1)} offset:{NEXT}")
    A("s_or_b32 s13, s12, 1")
    A(f"v_mov_b32 {v(vT0)}, s13")
    A(f"ds_write_b32 {v(vZ)}, {v(vT0)} offset:{TKT}")
    A("s_lshr_b32 s12, s12, 19")
    A("s_mov_b32 s13, 0")
    A(f"s_branch L_ok{tag}")

LBL("L_loop")
tile(0, "0")
tile(1, "1")
A("s_branch L_loop")
slow("0")
slow("1")
if OPT["NJ"]:
    slow("j0")
    slow("j1")
LBL("L_drain1")
tile(1, "d1", drain=True)
LBL("L_drainj1")
tile(0, "d1b", drain=True)
A("s_branch L_drained")
LBL("L_drain0")
tile(0, "d0", drain=True)
tile(1, "d0b", drain=True)
LBL("L_drained")
if OPT["NJ"]:
    C("late joiners: waves NACT..NACT+NJ-1 come back for the last rounds of their head")
    A(f"s_cmp_lt_u32 {sWAVE}, {sACT}")
    A("s_cbranch_scc1 L_loopend")
    A(f"s_cmp_ge_u32 {sWAVE}, {NACT+OPT['NJ']}")
    A("s_cbranch_scc1 L_loopend")
    A(f"s_mov_b32 {sACT}, 16")
    A("s_mov_b32 s13, 2000000")
    LBL("L_jwait")
    A("s_sleep 8")
    A(f"ds_read_b32 {v(vT0)}, {v(vZ)} offset:{TKT}")
    A("s_waitcnt lgkmcnt(0)")
    A(f"v_readfirstlane_b32 s12, {v(vT0)}")
    A("s_lshr_b32 s12, s12, 19")
    A(f"s_cmp_ge_u32 s12, {OPT['JR']*NR//64*ROW}")
    A("s_cbranch_scc1 L_jgo")
    A("s_sub_u32 s13, s13, 1")
    A("s_cmp_lg_u32 s13, 0")
    A("s_cbranch_scc1 L_jwait")
    A("s_branch L_loopend")
    LBL("L_jgo")
    draw("j0")
    issue_K(0); issue_V(0)
    pend("j0")
    draw("j1")
    issue_K(1); issue_V(1)
    pend("j1")
    A("s_branch L_loop")
    LBL("L_drainj0")
LBL("L_loopend")
stamp(2)
if OPT["NOTAIL"] == 1: A("s_endpgm")

C("===== T1: combine the waves of this workgroup, per head =====")
xrow_allreduce("v_add_f32", [vL], [vT0])
C("O -> LDS : OBUF + wave*2048 + ((l>>5)*256 + 8n + 4*((l>>4)&1))*4")
A(f"v_lshrrev_b32 {v(vT1)}, 5, {v(vLANE)}")
A(f"v_lshlrev_b32 {v(vT1)}, 10, {v(vT1)}")
A(f"v_lshl_add_u32 {v(vT1)}, {v(vN)}, 5, {v(vT1)}")
A(f"v_and_b32 {v(vT2)}, 1, {v(vG)}")
A(f"v_lshl_add_u32 {v(vT1)}, {v(vT2)}, 4, {v(vT1)}")
A(f"s_lshl_b32 s12, {sWAVE}, 11")
A(f"v_add_u32 {v(vT1)}, s12, {v(vT1)}")
A(f"ds_write_b128 {v(vT1)}, {vr(ACC,4)} offset:{OBUF}")
A(f"ds_write_b128 {v(vT1)}, {vr(ACC+4,4)} offset:{OBUF+512}")
C("(Mc,l) from lanes 0 and 8: ML + ((sel*2+qh)*WPH + wl)*8")
A(f"v_mul_u32_u24 {v(vT1)}, {WPH}, {v(vLANE)}")
A(f"s_lshr_b32 s12, {sWAVE}, {LHP}")
A(f"s_mul_i32 s13, {sSEL}, {2*WPH}")
A("s_add_u32 s12, s12, s13")
A("s_lshl_b32 s12, s12, 3")
A(f"v_add_u32 {v(vT1)}, s12, {v(vT1)}")
A("s_mov_b64 exec, 0x101")
A(f"ds_write_b64 {v(vT1)}, {vr(vMC,2)} offset:{ML}")
A("s_mov_b64 exec, -1")
PMERGE = OPT["PM"] and HP == 1 and not OPT["NJ"] and NACT <= 8
if PMERGE:
    C("the waves that stopped early are merged into slot NACT by the last of them (long before the stream ends)")
    A(f"s_cmp_lt_u32 {sWAVE}, {NACT}")
    A("s_cbranch_scc1 L_nomerge")
    A("v_mov_b32 v62, 0")
    A("s_waitcnt lgkmcnt(0)")
    A("s_mov_b64 exec, 1")
    A(f"ds_add_rtn_u32 v60, v62, {v(vONE)} offset:{MCNT}")
    A("s_mov_b64 exec, -1")
    A("s_waitcnt lgkmcnt(0)")
    A("v_readfirstlane_b32 s12, v60")
    A(f"s_cmp_lg_u32 s12, {15-NACT}")
    A("s_cbranch_scc1 L_nomerge")
    NI = 16 - NACT
    A(f"v_lshrrev_b32 v60, 5, {v(vLANE)}")
    A("v_lshlrev_b32 v60, 7, v60")
    A(f"v_lshlrev_b32 v62, 5, {v(vLANE)}")
    for k in range(8):
        A(f"ds_read_b128 {vr(16+4*k,4)}, v60 offset:{ML+16*k}")
    A("s_waitcnt lgkmcnt(0)")
    ms = [16+2*k for k in range(NACT, 16)]
    A(f"v_mov_b32 v48, {v(ms[0])}")
    for m_ in ms[1:]: A(f"v_max_f32 v48, v48, {v(m_)}")
    for m_ in ms: A(f"v_sub_f32 {v(m_)}, {v(m_)}, v48")
    for m_ in ms: A(f"v_exp_f32 {v(m_)}, {v(m_)}")
    A("s_nop 0")
    A(f"v_mul_f32 v49, {v(ms[0])}, {v(ms[0]+1)}")
    for m_ in ms[1:]: A(f"v_fmac_f32 v49, {v(m_)}, {v(m_+1)}")
    for half in range(2):
        grp = list(range(NACT, 16))
        for k, w in enumerate(grp):
            A(f"ds_read_b128 {vr(64+4*k,4)}, v62 offset:{OBUF+2048*w+16*half}")
        A("s_waitcnt lgkmcnt(0)")
        for k, w in enumerate(grp):
            for r in range(4):
                if k == 0: A(f"v_mul_f32 {v(52+4*half+r)}, {v(16+2*w)}, {v(64+4*k+r)}")
                else: A(f"v_fmac_f32 {v(52+4*half+r)}, {v(16+2*w)}, {v(64+4*k+r)}")
    A(f"ds_write_b128 v62, v[52:55] offset:{OBUF+2048*NACT}")
    A(f"ds_write_b128 v62, v[56:59] offset:{OBUF+2048*NACT+16}")
    A("s_mov_b32 exec_lo, 1")
    A("s_mov_b32 exec_hi, 1")
    A(f"ds_write_b64 v60, v[48:49] offset:{ML+8*NACT}")
    A("s_mov_b64 exec, -1")
    LBL("L_nomerge")
C("addresses for the combine (thread t: sel = t>>9, qh = (t>>8)&1, dim = t&255)")
A(f"s_lshr_b32 s7, {sWAVE}, 3")
A(f"s_mul_i32 s12, s7, {NG}")
A(f"s_add_u32 s12, s12, {sPG}")
A(f"s_lshl_b32 s12, s12, {5+LHP}")
A(f"s_add_u32 s12, s12, {sJ}")
A("s_lshl_b32 s12, s12, 13")
A("s_add_u32 s60, s42, s12"); A("s_addc_u32 s61, s43, 0")
A("v_lshrrev_b32 v60, 8, v0")
A(f"v_mul_u32_u24 v60, {WPH*8}, v60")
A("v_and_b32 v63, 511, v0")
A("s_lshl_b32 s13, s7, 11")
A("v_lshlrev_b32 v62, 2, v63")
A("v_add_u32 v62, s13, v62")
A(f"v_mov_b32 v45, {sTAG}"); A(f"v_mov_b32 v41, {sTAG}"); A(f"v_mov_b32 v43, {sTAG}")
A("s_waitcnt vmcnt(0) lgkmcnt(0)")
A("s_barrier")
if HP == 1:
    A(f"s_cmp_ge_u32 {sWAVE}, 8")
    A("s_cbranch_scc1 L_t3_check")
NS = NACT + 1 if PMERGE else WPH
for k in range((NS+1)//2):
    A(f"ds_read_b128 {vr(64+4*k,4)}, v60 offset:{ML+16*k}")
for k in range(NS):
    A(f"ds_read_b32 {v(96+k)}, v62 offset:{OBUF+2048*HP*k}")
A("v_lshlrev_b32 v62, 3, v63")
A(f"s_waitcnt lgkmcnt({min(15,NS)})")
A("v_max3_f32 v40, v64, v66, v68")
k = 3
while k < NS:
    if k+1 < NS: A(f"v_max3_f32 v40, v40, {v(64+2*k)}, {v(66+2*k)}"); k += 2
    else: A(f"v_max_f32 v40, v40, {v(64+2*k)}"); k += 1
for k in range(NS): A(f"v_sub_f32 {v(64+2*k)}, {v(64+2*k)}, v40")
for k in range(NS): A(f"v_exp_f32 {v(64+2*k)}, {v(64+2*k)}")
A("s_waitcnt lgkmcnt(0)")
A("v_mul_f32 v44, v64, v96")
for k in range(1, NS): A(f"v_fmac_f32 v44, {v(64+2*k)}, {v(96+k)}")
if OPT["W16"]:
    A(f"v_mov_b32 v47, {sTAG}")
    A("s_nop 0")
    A(f"v_mov_b32_dpp v46, v44 quad_perm:[1,1,3,3] {DPPALL}")
    A("s_mov_b32 exec_lo, 0x55555555")
    A("s_mov_b32 exec_hi, 0x55555555")
    A("global_store_dwordx4 v62, v[44:47], s[60:61] sc1")
    A("s_mov_b64 exec, -1")
else:
    A("global_store_dwordx2 v62, v[44:45], s[60:61] sc1")
A("v_mul_f32 v42, v64, v65")
for k in range(1, NS): A(f"v_fmac_f32 v42, {v(64+2*k)}, {v(65+2*k)}")
A("v_and_b32 v62, 255, v0")
A("v_lshrrev_b32 v60, 4, v63")
A("v_add_u32 v60, 0x1000, v60")
A("v_cmp_eq_u32 vcc, 0, v62")
A("s_and_saveexec_b64 s[62:63], vcc")
A("s_cbranch_execz L_t1_noml")
A("global_store_dwordx4 v60, v[40:43], s[60:61] sc1")
LBL("L_t1_noml")
A("s_mov_b64 exec, s[62:63]")
if OPT["NOTAIL"] == 2: A("s_endpgm")
A(f"s_cmp_lg_u32 {sWAVE}, 0")
A("s_cbranch_scc1 L_t3_check")

NK = 8*HP
C("===== T2 (wave 0): combine the head's partials for 16 o-dims, out-projection =====")
A(f"v_mul_u32_u24 v60, 896, {v(vG)}")
A(f"v_lshl_add_u32 v60, {v(vN)}, 4, v60")
for jj in range(4):
    for cb in range(4):
        A(f"ds_read_b128 {vr(64+16*jj+4*cb,4)}, v60 offset:{WOBUF+jj*3584+cb*256}")
if not OPT["W16"]:
    C("O granules: slot (hT*NP + sq*NK + k), offset (16 sl + d)*8")
    A(f"v_lshlrev_b32 v60, {13+3+LHP}, {v(vG)}")
    A(f"v_lshl_add_u32 v60, {v(vN)}, 3, v60")
    A(f"s_lshl_b32 s13, {sHT}, {13+5+LHP}")
    A(f"s_lshl_b32 s14, {sSL}, 7")
    A("s_add_u32 s14, s13, s14")
    A("v_add_u32 v60, s14, v60")
    A(f"v_and_b32 v62, {NP-1}, {v(vLANE)}")
    A("v_lshlrev_b32 v62, 13, v62")
    A(f"s_lshr_b32 s14, {sSL}, 4")
    A("s_lshl_b32 s14, s14, 4")
    A("s_add_u32 s13, s13, s14")
    A("s_add_u32 s13, s13, 0x1000")
    A("v_add_u32 v62, s13, v62")
    OR_, MLR = 16, 48
    loads = ["s_mov_b32 s13, 0"]
    for k in range(NK):
        loads.append(f"buffer_load_dwordx2 {vr(OR_+2*k,2)}, v60, {srdWS}, s13 offen sc1")
        if k < NK-1: loads.append("s_add_u32 s13, s13, 8192")
    loads.append(f"buffer_load_dwordx4 {vr(MLR,4)}, v62, {srdWS}, 0 offen sc1")
    poll("t2", loads, [OR_+1+2*k for k in range(NK)] + [MLR+1, MLR+3])
    stamp(3)
    sw = (16,) if HP == 1 else (32, 16)
    A(f"v_mov_b32 v52, {v(MLR)}")
    row_allreduce("v_max_f32", [52])
    xrow_allreduce("v_max_f32", [52], [53], which=sw)
    A(f"v_sub_f32 {v(MLR)}, {v(MLR)}, v52")
    A(f"v_exp_f32 {v(MLR)}, {v(MLR)}")
    A("s_nop 0")
    A(f"v_mul_f32 {v(MLR+2)}, {v(MLR+2)}, {v(MLR)}")
    row_allreduce("v_add_f32", [MLR+2])
    xrow_allreduce("v_add_f32", [MLR+2], [53], which=sw)
    A(f"v_rcp_f32 {v(MLR+2)}, {v(MLR+2)}")
    A(f"v_lshlrev_b32 v62, 2, {v(vLANE)}")
    A(f"v_mul_f32 {v(MLR)}, {v(MLR)}, {v(MLR+2)}")
    if HP == 1: A("s_mov_b32 exec_hi, 0")
    A(f"ds_write_b32 v62, {v(MLR)} offset:{WGT}")
    if HP == 1: A("s_mov_b64 exec, -1")
    A(f"v_lshlrev_b32 v62, {5+LHP}, {v(vG)}")
    A("s_waitcnt lgkmcnt(0)")
    WR = [8, 12, 52, 56]
    for q4 in range(NK//4):
        A(f"ds_read_b128 {vr(WR[q4],4)}, v62 offset:{WGT+16*q4}")
    A("s_waitcnt lgkmcnt(0)")
    A(f"v_mul_f32 v60, v8, {v(OR_)}")
    for k in range(1, NK): A(f"v_fmac_f32 v60, {v(WR[k//4]+k%4)}, {v(OR_+2*k)}")
    xrow_allreduce("v_add_f32", [60], [61])
    A("v_cvt_pk_bf16_f32 v60, v60, v60")
    A(f"v_lshlrev_b32 v62, 2, {v(vG)}")
    for jj in range(4):
        A(f"v_add_u32 v61, {16*jj}, v62")
        A(f"ds_bpermute_b32 {v(40+jj)}, v61, v60")
    A("s_waitcnt lgkmcnt(0)")
else:
    NK4 = 4*HP
    C("O granule pairs: lane (d2 = l&7, sg = l>>3): slots hT*NP + sg*NK4 + k, offset (16 sl + 2 d2)*8")
    A(f"v_lshrrev_b32 v61, 3, {v(vLANE)}")
    A(f"v_lshlrev_b32 v60, {13+2+LHP}, v61")
    A(f"v_and_b32 v63, 7, {v(vLANE)}")
    A("v_lshl_add_u32 v60, v63, 4, v60")
    A(f"s_lshl_b32 s13, {sHT}, {13+5+LHP}")
    A(f"s_lshl_b32 s14, {sSL}, 7")
    A("s_add_u32 s14, s13, s14")
    A("v_add_u32 v60, s14, v60")
    if not (OPT["T2F"] and HP == 1):
        A(f"v_and_b32 v62, {NP-1}, {v(vLANE)}")
        A("v_lshlrev_b32 v62, 13, v62")
        A(f"s_lshr_b32 s14, {sSL}, 4")
        A("s_lshl_b32 s14, s14, 4")
        A("s_add_u32 s13, s13, s14")
        A("s_add_u32 s13, s13, 0x1000")
        A("v_add_u32 v62, s13, v62")
        C("selector: replicate low (g even) or high (g odd) half")
        A(f"v_and_b32 v63, 1, {v(vG)}")
        A("v_mul_u32_u24 v63, 0x0202, v63")
        A("v_lshl_or_b32 v63, v63, 16, v63")
        A("v_add_u32 v63, 0x01000100, v63")
        OR_, MLR = 16, 48
        loads = ["s_mov_b32 s13, 0"]
        for k in range(NK4):
            loads.append(f"buffer_load_dwordx4 {vr(OR_+4*k,4)}, v60, {srdWS}, s13 offen sc1")
            if k < NK4-1: loads.append("s_add_u32 s13, s13, 8192")
        loads.append(f"buffer_load_dwordx4 {vr(MLR,4)}, v62, {srdWS}, 0 offen sc1")
        poll("t2", loads, [OR_+1+2*k for k in range(2*NK4)] + [MLR+1, MLR+3])
        stamp(3)
        sw = (16,) if HP == 1 else (32, 16)
        A(f"v_mov_b32 v52, {v(MLR)}")
        row_allreduce("v_max_f32", [52])
        xrow_allreduce("v_max_f32", [52], [53], which=sw)
        A(f"v_sub_f32 {v(MLR)}, {v(MLR)}, v52")
        A(f"v_exp_f32 {v(MLR)}, {v(MLR)}")
        A("s_nop 0")
        A(f"v_mul_f32 {v(MLR+2)}, {v(MLR+2)}, {v(MLR)}")
        row_allreduce("v_add_f32", [MLR+2])
        xrow_allreduce("v_add_f32", [MLR+2], [53], which=sw)
        A(f"v_rcp_f32 {v(MLR+2)}, {v(MLR+2)}")
        A(f"v_lshlrev_b32 v62, 2, {v(vLANE)}")
        A(f"v_mul_f32 {v(MLR)}, {v(MLR)}, {v(MLR+2)}")
        if HP == 1: A("s_mov_b32 exec_hi, 0")
        A(f"ds_write_b32 v62, {v(MLR)} offset:{WGT}")
        if HP == 1: A("s_mov_b64 exec, -1")
        A(f"v_lshlrev_b32 v62, {4+LHP}, v61")
        A("s_waitcnt lgkmcnt(0)")
        for q4 in range(NK4//4):
            A(f"ds_read_b128 {vr(8+4*q4,4)}, v62 offset:{WGT+16*q4}")
        A("s_waitcnt lgkmcnt(0)")
        A(f"v_mul_f32 v52, v8, {v(OR_)}")
        A(f"v_mul_f32 v53, v8, {v(OR_+2)}")
        for k in range(1, NK4):
            A(f"v_fmac_f32 v52, {v(8+k)}, {v(OR_+4*k)}")
            A(f"v_fmac_f32 v53, {v(8+k)}, {v(OR_+4*k+2)}")
        A("s_nop 0")
        A(f"v_add_f32_dpp v52, v52, v52 row_ror:8 {DPPALL}")
        A(f"v_add_f32_dpp v53, v53, v53 row_ror:8 {DPPALL}")
        xrow_allreduce("v_add_f32", [52, 53], [54, 55])
    else:
        C("each lane also reads (M,L) of its own 4 producers")
        A("v_lshlrev_b32 v62, 15, v61")
        A(f"s_lshr_b32 s14, {sSL}, 4")
        A("s_lshl_b32 s14, s14, 4")
        A("s_add_u32 s13, s13, s14")
        A("s_add_u32 s13, s13, 0x1000")
        A("v_add_u32 v62, s13, v62")
        A(f"v_and_b32 v63, 1, {v(vG)}")
        A("v_mul_u32_u24 v63, 0x0202, v63")
        A("v_lshl_or_b32 v63, v63, 16, v63")
        A("v_add_u32 v63, 0x01000100, v63")
        OR_, MLR = 16, 32
        loads = ["s_mov_b32 s13, 0"]
        for k in range(4):
            loads.append(f"buffer_load_dwordx4 {vr(OR_+4*k,4)}, v60, {srdWS}, s13 offen sc1")
            loads.append(f"buffer_load_dwordx4 {vr(MLR+4*k,4)}, v62, {srdWS}, s13 offen sc1")
            if k < 3: loads.append("s_add_u32 s13, s13, 8192")
        poll("t2", loads, [OR_+1+2*k for k in range(16)])
        stamp(3)
        A(f"v_max3_f32 v52, {v(MLR)}, {v(MLR+4)}, {v(MLR+8)}")
        A(f"v_max_f32 v52, v52, {v(MLR+12)}")
        A("s_nop 1")
        A(f"v_max_f32_dpp v52, v52, v52 row_ror:8 {DPPALL}")
        xrow_allreduce("v_max_f32", [52], [53])
        for k in range(4): A(f"v_sub_f32 {v(MLR+4*k)}, {v(MLR+4*k)}, v52")
        for k in range(4): A(f"v_exp_f32 {v(MLR+4*k)}, {v(MLR+4*k)}")
        A(f"v_mul_f32 v52, {v(MLR)}, {v(OR_)}")
        A(f"v_mul_f32 v53, {v(MLR)}, {v(OR_+2)}")
        A(f"v_mul_f32 v54, {v(MLR)}, {v(MLR+2)}")
        for k in range(1, 4):
            A(f"v_fmac_f32 v52, {v(MLR+4*k)}, {v(OR_+4*k)}")
            A(f"v_fmac_f32 v53, {v(MLR+4*k)}, {v(OR_+4*k+2)}")
            A(f"v_fmac_f32 v54, {v(MLR+4*k)}, {v(MLR+4*k+2)}")
        for r in (52, 53, 54): A(f"v_add_f32_dpp {v(r)}, {v(r)}, {v(r)} row_ror:8 {DPPALL}")
        xrow_allreduce("v_add_f32", [52, 53, 54], [55, 56, 57])
        A("v_rcp_f32 v54, v54")
        A("s_nop 0")
        A("v_mul_f32 v52, v52, v54")
        A("v_mul_f32 v53, v53, v54")
    A("v_cvt_pk_bf16_f32 v60, v52, v53")
    A(f"v_lshrrev_b32 v62, 1, {v(vG)}")
    A("v_lshlrev_b32 v62, 2, v62")
    for jj in range(4):
        A(f"v_add_u32 v61, {8*jj}, v62")
        A(f"ds_bpermute_b32 {v(40+jj)}, v61, v60")
    A("s_waitcnt lgkmcnt(0)")
    for jj in range(4):
        A(f"v_perm_b32 {v(40+jj)}, {v(40+jj)}, {v(40+jj)}, v63")
for jj in range(4):
    for d in range(4):
        A(f"v_and_b32 {v(44+4*jj+d)}, {v(40+jj)}, {v(MASK+d)}")
A("s_nop 1")
for jj in range(4):
    for cb in range(4):
        src = "0" if jj == 0 else vr(8+4*cb, 4)
        A(f"v_mfma_f32_16x16x32_bf16 {vr(8+4*cb,4)}, {vr(44+4*jj,4)}, {vr(64+16*jj+4*cb,4)}, {src}")
C("a-vector store address: AVEC + wg*4096 + (8n+4G)*8 + cb*1024")
A(f"v_lshlrev_b32 v62, 6, {v(vN)}")
A(f"v_lshl_add_u32 v62, {v(vG)}, 5, v62")
A("s_lshl_b32 s13, s2, 12")
A(f"s_add_u32 s13, s13, {AVEC}")
A("v_add_u32 v62, s13, v62")
for t in range(8):
    A(f"v_mov_b32 {v(25+4*t)}, {sTAG}")
    A(f"v_mov_b32 {v(27+4*t)}, {sTAG}")
A("s_nop 3")
for cb in range(4):
    for hfp in range(2):
        t = 2*cb + hfp
        A(f"v_mov_b32 {v(24+4*t)}, {v(8+4*cb+2*hfp)}")
        A(f"v_mov_b32 {v(26+4*t)}, {v(8+4*cb+2*hfp+1)}")
A("s_mov_b32 exec_hi, 0")
for cb in range(4):
    if cb == 3: A("s_mov_b64 exec, 0x00ff00ff")
    for hfp in range(2):
        t = 2*cb + hfp
        A(f"global_store_dwordx4 v62, {vr(24+4*t,4)}, {pWS} offset:{cb*1024+16*hfp} sc1")
A("s_mov_b64 exec, -1")
stamp(4)

LBL("L_t3_check")
if OPT["NOTAIL"]: A("s_endpgm")
A(f"s_cmp_lt_u32 {sIDX}, 28")
A("s_cbranch_scc1 L_end")
A(f"s_sub_u32 s6, {sIDX}, 28")
A("s_lshl_b32 s6, s6, 3")
A(f"s_add_u32 s6, s6, {sX}")
A("s_cmp_ge_u32 s6, 28")
A("s_cbranch_scc1 L_end")
C("===== T3: final reduce for columns 16f..16f+15 =====")
A("v_lshrrev_b32 v60, 3, v0")
A("v_lshlrev_b32 v60, 12, v60")
A("v_and_b32 v61, 7, v0")
A("v_lshl_add_u32 v60, v61, 4, v60")
A("s_lshl_b32 s13, s6, 7")
A("v_add_u32 v60, s13, v60")
A("s_lshl_b32 s13, s6, 5")
A("v_lshlrev_b32 v61, 2, v61")
A("v_add_u32 v61, s13, v61")
A(f"global_load_dword v56, v61, {pB2}")
A(f"s_mov_b32 s64, {AVEC}"); A(f"s_mov_b32 s65, {AVEC+128*VSTR}"); A(f"s_mov_b32 s66, {BVEC}"); A(f"s_mov_b32 s67, {BVEC+128*VSTR}")
if not OPT["BS"]:
    A(f"s_cmp_ge_u32 {sWAVE}, 12")
    A("s_cbranch_scc1 L_t3_p3")
    loads = [f"buffer_load_dwordx4 {vr(16+4*k,4)}, v60, {srdWS}, s{64+k} offen sc1" for k in range(4)]
    poll("t3a", loads, [17+2*k for k in range(8)])
    A("s_branch L_t3_sum")
    LBL("L_t3_p3")
    A("v_mov_b32 v28, 0"); A("v_mov_b32 v30, 0")
    poll("t3b", loads[:3], [17+2*k for k in range(6)])
else:
    loads = [f"buffer_load_dwordx4 {vr(16+4*k,4)}, v60, {srdWS}, s{64+k} offen sc1" for k in range(4)]
    A(f"s_cmp_ge_u32 {sWAVE}, 12")
    A("s_cbranch_scc1 L_t3_p3")
    poll("t3b2", loads[2:4], [25, 27, 29, 31])
    A("s_branch L_t3_pa")
    LBL("L_t3_p3")
    A("v_mov_b32 v28, 0"); A("v_mov_b32 v30, 0")
    poll("t3b1", loads[2:3], [25, 27])
    LBL("L_t3_pa")
    if OPT["T3F"]:
        C("MLP branch, gate and bias are combined before the attention part arrives")
        A("v_add_f32 v42, v24, v28"); A("v_add_f32 v43, v26, v30")
        A("s_nop 0")
        for r in (42, 43): A(f"v_add_f32_dpp {v(r)}, {v(r)}, {v(r)} row_ror:8 {DPPALL}")
        xrow_allreduce("v_add_f32", [42, 43], [44, 45])
        A(f"v_lshlrev_b32 v62, 3, {v(vLANE)}")
        A(f"s_lshl_b32 s13, {sWAVE}, 6")
        A("v_add_u32 v62, s13, v62")
        A("s_mov_b64 exec, 0xff")
        A(f"ds_write_b64 v62, v[42:43] offset:{RED}")
        A("s_mov_b64 exec, -1")
        A("s_waitcnt lgkmcnt(0)")
        A("s_barrier")
        A(f"s_cmp_lg_u32 {sWAVE}, 0")
        A("s_cbranch_scc1 L_t3_a")
        A(f"v_lshlrev_b32 v63, 3, {v(vLANE)}")
        A(f"ds_read_b64 v[42:43], v63 offset:{RED}")
        A(f"ds_read_b64 v[44:45], v63 offset:{RED+512}")
        A("v_mov_b32 v59, 0")
        A(f"ds_read_b32 v57, v59 offset:{GATE}")
        A("s_waitcnt lgkmcnt(0)")
        A("v_add_f32 v42, v42, v44"); A("v_add_f32 v43, v43, v45")
        A("s_nop 0")
        for r in (42, 43): A(f"v_add_f32_dpp {v(r)}, {v(r)}, {v(r)} row_ror:8 {DPPALL}")
        xrow_allreduce("v_add_f32", [42, 43], [44, 45])
        A("v_cvt_pk_bf16_f32 v42, v42, v43")
        unpack(44, 45, 42); unpack(46, 47, 56)
        A("v_add_f32 v44, v44, v46"); A("v_add_f32 v45, v45, v47")
        A("v_cvt_pk_bf16_f32 v42, v44, v45")
        A("v_sub_f32 v58, 1.0, v57")
        rnd(58)
        unpack(46, 47, 42)
        A("v_mul_f32 v46, v46, v58"); A("v_mul_f32 v47, v47, v58")
        A("v_cvt_pk_bf16_f32 v42, v46, v47")
        unpack(50, 51, 42)
        LBL("L_t3_a")
    poll("t3a", loads[0:2], [17, 19, 21, 23])
if OPT["BS"] and OPT["T3F"]:
    stamp(5)
    A("v_add_f32 v40, v16, v20"); A("v_add_f32 v41, v18, v22")
    A("s_nop 0")
    for r in (40, 41): A(f"v_add_f32_dpp {v(r)}, {v(r)}, {v(r)} row_ror:8 {DPPALL}")
    xrow_allreduce("v_add_f32", [40, 41], [44, 45])
    A("s_mov_b64 exec, 0xff")
    A(f"ds_write_b64 v62, v[40:41] offset:{RED+1024}")
    A("s_mov_b64 exec, -1")
    A("s_waitcnt lgkmcnt(0)")
    A("s_barrier")
    A(f"s_cmp_lg_u32 {sWAVE}, 0")
    A("s_cbranch_scc1 L_end")
    A(f"ds_read_b64 v[40:41], v63 offset:{RED+1024}")
    A(f"ds_read_b64 v[44:45], v63 offset:{RED+1536}")
    A("s_waitcnt lgkmcnt(0)")
    A("v_add_f32 v40, v40, v44"); A("v_add_f32 v41, v41, v45")
    A("s_nop 0")
    for r in (40, 41): A(f"v_add_f32_dpp {v(r)}, {v(r)}, {v(r)} row_ror:8 {DPPALL}")
    xrow_allreduce("v_add_f32", [40, 41], [44, 45])
    A("v_cvt_pk_bf16_f32 v40, v40, v41")
    unpack(44, 45, 40)
    A("v_mul_f32 v44, v44, v57"); A("v_mul_f32 v45, v45, v57")
    A("v_cvt_pk_bf16_f32 v40, v44, v45")
    unpack(44, 45, 40)
    A("v_add_f32 v44, v44, v50"); A("v_add_f32 v45, v45, v51")
    A("v_cvt_pk_bf16_f32 v40, v44, v45")
else:
    LBL("L_t3_sum")
    stamp(5)
    A("v_add_f32 v40, v16, v20"); A("v_add_f32 v41, v18, v22"); A("v_add_f32 v42, v24, v28"); A("v_add_f32 v43, v26, v30")
    for r in range(40, 44): A(f"v_add_f32_dpp {v(r)}, {v(r)}, {v(r)} row_ror:8 {DPPALL}")
    xrow_allreduce("v_add_f32", [40, 41, 42, 43], [44, 45, 46, 47])
    A(f"v_lshlrev_b32 v62, 4, {v(vLANE)}")
    A(f"s_lshl_b32 s13, {sWAVE}, 7")
    A("v_add_u32 v62, s13, v62")
    A("s_mov_b64 exec, 0xff")
    A(f"ds_write_b128 v62, v[40:43] offset:{RED}")
    A("s_mov_b64 exec, -1")
    A("s_waitcnt lgkmcnt(0)")
    A("s_barrier")
    A(f"s_cmp_lg_u32 {sWAVE}, 0")
    A("s_cbranch_scc1 L_end")
    A(f"v_lshlrev_b32 v62, 4, {v(vLANE)}")
    A(f"ds_read_b128 v[40:43], v62 offset:{RED}")
    A(f"ds_read_b128 v[44:47], v62 offset:{RED+1024}")
    A("v_mov_b32 v62, 0")
    A(f"ds_read_b32 v57, v62 offset:{GATE}")
    A("s_waitcnt lgkmcnt(0)")
    for k in range(4): A(f"v_add_f32 {v(40+k)}, {v(40+k)}, {v(44+k)}")
    for r in range(40, 44): A(f"v_add_f32_dpp {v(r)}, {v(r)}, {v(r)} row_ror:8 {DPPALL}")
    xrow_allreduce("v_add_f32", [40, 41, 42, 43], [44, 45, 46, 47])
    C("epilogue with the reference's bf16 roundings")
    A("v_cvt_pk_bf16_f32 v40, v40, v41")
    A("v_cvt_pk_bf16_f32 v42, v42, v43")
    unpack(44, 45, 42); unpack(46, 47, 56)
    A("v_add_f32 v44, v44, v46"); A("v_add_f32 v45, v45, v47")
    A("v_cvt_pk_bf16_f32 v42, v44, v45")
    A("v_sub_f32 v58, 1.0, v57")
    rnd(58)
    unpack(44, 45, 40)
    A("v_mul_f32 v44, v44, v57"); A("v_mul_f32 v45, v45, v57")
    A("v_cvt_pk_bf16_f32 v40, v44, v45")
    unpack(46, 47, 42)
    A("v_mul_f32 v46, v46, v58"); A("v_mul_f32 v47, v47, v58")
    A("v_cvt_pk_bf16_f32 v42, v46, v47")
    unpack(44, 45, 40); unpack(46, 47, 42)
    A("v_add_f32 v44, v44, v46"); A("v_add_f32 v45, v45, v47")
    A("v_cvt_pk_bf16_f32 v40, v44, v45")
A("s_mov_b64 exec, 0xff")
A(f"global_store_dword v61, v40, {pOUT}" + (" sc0 sc1" if OPT["OUTSC"] else ""))
A("s_cmp_lg_u32 s6, 0")
A("s_cbranch_scc1 L_noepoch")
A(f"s_add_u32 {sEP}, {sEP}, 1")
A(f"v_mov_b32 v44, {sEP}")
A(f"v_mov_b32 v45, {EPOCH}")
A("s_mov_b64 exec, 1")
A(f"global_store_dword v45, v44, {pWS} sc1")
LBL("L_noepoch")
A("s_mov_b64 exec, -1")
stamp(6)
LBL("L_end")
A("s_endpgm")

hdr = open("cdna_kernels/%s.s.ref" % NAME).read().split("; Override launch geometry")[0]
out = hdr
out += """; generated by gen/gen6.py (hand-written generator script).
;  Hand-offs are {value, tag} granules in d_ws; the tag is derived from an epoch word in d_ws that each launch advances.
"""
out += f"; @launch grid=(256,1,1) block=(1024,1,1) lds={LDS_BYTES}\n"
out += '.amdgcn_target "amdgcn-amd-amdhsa--gfx950"\n.text\n'
out += f".globl {NAME}_kernel\n.p2align 8\n.type {NAME}_kernel,@function\n"
out += "\n".join(L) + "\n"
out += f""".section .rodata,"a"
.p2align 6
.amdhsa_kernel {NAME}_kernel
  .amdhsa_next_free_vgpr 128
  .amdhsa_next_free_sgpr 96
  .amdhsa_accum_offset 128
  .amdhsa_group_segment_fixed_size 0
  .amdhsa_kernarg_size 112
  .amdhsa_user_sgpr_count 2
  .amdhsa_user_sgpr_kernarg_segment_ptr 1
  .amdhsa_system_sgpr_workgroup_id_x 1
.end_amdhsa_kernel
"""
open(sys.argv[1], "w").write(out)
print("LDS", LDS_BYTES, "instrs", sum(1 for l in L if l.startswith("    ") and not l.strip().startswith(";")))
```
